```python
import torch

def _softmax(x, axis=-1):
    return torch.softmax(x, dim=axis)
def _gelu(x):
    return torch.nn.functional.gelu(x, approximate="tanh")
def _silu(x):
    return torch.nn.functional.silu(x)
def _sigmoid(x):
    return torch.sigmoid(x)
def _layernorm(x, axis=-1, eps=1e-5):
    m = x.mean(dim=axis, keepdim=True)
    v = x.var(dim=axis, keepdim=True, unbiased=False)
    return (x - m) / torch.sqrt(v + eps)
def _scatter_add(tgt, idx, src, axis=0):
    return tgt.clone().index_add_(axis, idx, src)
def _segment_sum(src, seg, n):
    out = torch.zeros((n,) + src.shape[1:], dtype=src.dtype)
    return out.index_add_(0, seg, src)
def _pad(x, pw):
    flat = tuple(v for pair in reversed(pw) for v in pair)
    return torch.nn.functional.pad(x, flat)

kernel_name = 'interleave_layers__sliding_block__dense_activation_silu__prompt'

def setup_inputs():

    _w = (lambda a: (lambda t: t.to(torch.bfloat16) if t.is_floating_point() else t)(torch.as_tensor(a)))
    def _A_setup():
        B, S, D = 1, 2048, 640
        return {
            "x": _w((lambda *s: torch.randn(*s, dtype=torch.bfloat16) * 0.05)(B, S, D)),
            "wqkv": _w((lambda *s: torch.randn(*s, dtype=torch.bfloat16) * 0.05)(D, 3 * D)),
            "wo": _w((lambda *s: torch.randn(*s, dtype=torch.bfloat16) * 0.05)(D, D)),
        }
    _A_in = _A_setup()

    def _B_setup():
        B, S, D, F = 1, 2048, 640, 1728
        return {
            "x": _w((lambda *s: torch.randn(*s, dtype=torch.bfloat16) * 0.05)(B, S, D)),
            "w1": _w((lambda *s: torch.randn(*s, dtype=torch.bfloat16) * 0.8)(D, F) * (D ** -0.5)),
            "w2": _w((lambda *s: torch.randn(*s, dtype=torch.bfloat16) * 0.8)(F, D) * (F ** -0.5)),
        }
    _B_in = _B_setup()

    return {
        "A_x": _A_in["x"],
        "A_wqkv": _A_in["wqkv"],
        "A_wo": _A_in["wo"],
        "B_x": _B_in["x"],
        "B_w1": _B_in["w1"],
        "B_w2": _B_in["w2"],
    }

def reference(A_x, A_wqkv, A_wo, B_x, B_w1, B_w2):
    def _A_ref(x, wqkv, wo):
        B, S, D = x.shape
        H = 32; Dh = D // H; W = 256
        qkv = (lambda x, *d: x.permute(*d))((x @ wqkv).reshape(B, S, 3, H, Dh), 2, 0, 3, 1, 4)
        q, k, v = qkv[0], qkv[1], qkv[2]
        scores = torch.einsum("bhqd,bhkd->bhqk", q, k) * (Dh ** -0.5)
        idx = torch.arange(S)
        mask = (idx[:, None] - idx[None, :] >= 0) & (idx[:, None] - idx[None, :] < W)
        scores = torch.where(mask[None, None], scores, -1e9)
        p = _softmax(scores, axis=-1)
        o = torch.einsum("bhqk,bhkd->bhqd", p, v)
        return (lambda x, *d: x.permute(*d))(o, 0, 2, 1, 3).reshape(B, S, D) @ wo

    def _B_ref(x, w1, w2):
        h = torch.einsum("bsd,df->bsf", x, w1)
        h = _silu(h)
        out = torch.einsum("bsf,fd->bsd", h, w2)
        return out

    x = A_x
    x = x + _A_ref(_layernorm(x, axis=-1), A_wqkv, A_wo)
    x = x + _B_ref(_layernorm(x, axis=-1), B_w1, B_w2)
    x = x + _A_ref(_layernorm(x, axis=-1), A_wqkv, A_wo)
    x = x + _B_ref(_layernorm(x, axis=-1), B_w1, B_w2)
    return x
```

```python
import re

TRANS = ("v_exp_f32", "v_log_f32", "v_rcp_f32", "v_rsq_f32", "v_sqrt_f32", "v_sin_f32", "v_cos_f32")

def regs_of(tok):
    tok = tok.strip()
    if tok.startswith("-"):
        tok = tok[1:]
    m = re.fullmatch(r"abs\((.*)\)|\|(.*)\|", tok)
    if m:
        tok = m.group(1) or m.group(2)
    m = re.fullmatch(r"([vas])(\d+)", tok)
    if m:
        return {(m.group(1), int(m.group(2)))}
    m = re.fullmatch(r"([vas])\[(\d+):(\d+)\]", tok)
    if m:
        return {(m.group(1), i) for i in range(int(m.group(2)), int(m.group(3)) + 1)}
    if tok == "vcc":
        return {("s", "vcc")}
    if tok == "exec":
        return {("s", "exec")}
    if tok == "m0":
        return {("s", "m0")}
    return set()

class Ins:
    __slots__ = ("text", "mn", "ops", "wr", "rd", "kind", "passes", "srcC", "srcAB", "label", "target", "sdata")
    def __init__(self, text):
        self.text = text
        self.label = None
        self.target = None
        self.passes = 0
        self.srcC = set()
        self.srcAB = set()
        self.sdata = set()
        t = text.split(";")[0].strip()
        if t.endswith(":"):
            self.label = t[:-1]
            self.kind = "label"; self.mn = ""; self.ops = []; self.wr = set(); self.rd = set()
            return
        if t.startswith(".") or not t:
            self.kind = "dir"; self.mn = ""; self.ops = []; self.wr = set(); self.rd = set()
            return
        parts = t.split(None, 1)
        mn = parts[0]
        self.mn = mn
        rest = parts[1] if len(parts) > 1 else ""
        ops = [o.strip() for o in re.split(r",(?![^\[]*\])", rest)] if rest else []
        if ops:
            last = ops[-1].split()
            ops[-1] = last[0] if last else ""
            mods = last[1:]
        else:
            mods = []
        self.ops = ops
        R = [regs_of(o) for o in ops]
        U = lambda xs: set().union(*xs) if xs else set()
        base = re.sub(r"_e(32|64)$", "", mn)
        if mn.startswith("v_mfma"):
            self.kind = "mfma"
            self.passes = 8 if "32x32" in mn else 4
            self.wr = R[0]; self.srcAB = R[1] | R[2]; self.srcC = R[3]; self.rd = self.srcAB | self.srcC
        elif mn.startswith("v_"):
            self.kind = "trans" if base in TRANS else "valu"
            self.wr = set(R[0]); self.rd = U(R[1:])
            if base.startswith("v_permlane") and "swap" in base:
                self.wr = R[0] | R[1]; self.rd = R[0] | R[1]
            if base in ("v_fmac_f32", "v_dot2c_f32_bf16"):
                self.rd |= R[0]
            if base in ("v_add_co_u32", "v_sub_co_u32", "v_addc_co_u32"):
                self.wr |= R[1]
        elif mn.startswith("ds_read"):
            self.kind = "ds"; self.wr = R[0]; self.rd = U(R[1:])
        elif mn.startswith("ds_write"):
            self.kind = "ds"; self.wr = set(); self.rd = U(R)
        elif mn.startswith("buffer_load") or mn.startswith("global_load"):
            self.kind = "vmem"
            if "lds" in mods or "_lds_" in mn:
                self.wr = set(); self.rd = U(R) | {("s", "m0")}; self.kind = "dma"
            else:
                self.wr = R[0]; self.rd = U(R[1:])
        elif mn.startswith("buffer_store"):
            self.kind = "vmem"; self.wr = set(); self.rd = U(R)
            if mn.endswith("x4") or mn.endswith("x3"):
                self.sdata = R[0]
        elif mn.startswith("global_store"):
            self.kind = "vmem"; self.wr = set(); self.rd = U(R)
            if mn.endswith("x4") or mn.endswith("x3"):
                self.sdata = R[1]
        elif mn.startswith("s_cbranch") or mn == "s_branch":
            self.kind = "branch"; self.target = ops[0]; self.wr = set(); self.rd = set()
        elif mn in ("s_waitcnt", "s_barrier", "s_nop", "s_endpgm", "s_setprio", "s_sleep"):
            self.kind = "sopp"; self.wr = set(); self.rd = set()
        elif mn.startswith("s_cmp") or mn.startswith("s_bitcmp"):
            self.kind = "salu"; self.wr = set(); self.rd = U(R)
        elif mn.startswith("s_load") or mn in ("s_memtime", "s_memrealtime"):
            self.kind = "smem"; self.wr = R[0]; self.rd = U(R[1:])
        elif mn.startswith("s_"):
            self.kind = "salu"; self.wr = set(R[0]); self.rd = U(R[1:])
            if "saveexec" in mn:
                self.wr |= {("s", "exec")}
        else:
            raise ValueError("unknown instruction: " + text)

    def states(self):
        if self.kind in ("label", "dir"):
            return 0
        if self.mn == "s_nop":
            return int(self.ops[0], 0) + 1
        return 1

def is_vec(r):
    return r[0] in "va"

def need(p, c):
    n = 0
    pv = p.kind in ("valu", "trans")
    cv = c.kind in ("valu", "trans")
    cb = re.sub(r"_e(32|64)$", "", c.mn)
    if pv:
        vw = {r for r in p.wr if is_vec(r)}
        sw = {r for r in p.wr if not is_vec(r)}
        if c.kind == "mfma" and vw & c.rd:
            n = max(n, 2)
        if cv and cb.startswith("v_permlane") and vw & c.rd:
            n = max(n, 2)
        if cv and cb in ("v_readfirstlane_b32", "v_readlane_b32") and vw & c.rd:
            n = max(n, 1)
        if cv and "dpp" in c.text and vw & c.rd:
            n = max(n, 2)
        if p.kind == "trans" and c.kind == "valu" and vw & c.rd:
            n = max(n, 1)
        if cv and sw & c.rd:
            n = max(n, 2)
        if c.kind in ("vmem", "dma") and sw & c.rd:
            n = max(n, 5)
        if c.kind in ("salu", "smem") and sw & c.rd:
            n = max(n, 1)
        if "op_sel" in p.text and not p.mn.startswith("v_pk") and cv and vw & (c.rd | c.wr):
            n = max(n, 1)
    if p.kind == "mfma":
        big = {4: 8, 8: 12}[p.passes]
        if cv and p.wr & (c.rd | c.wr):
            n = max(n, big)
        if c.kind in ("vmem", "dma", "ds") and p.wr & (c.rd | c.wr):
            n = max(n, big)
        if c.kind == "mfma":
            if p.wr & c.srcAB:
                n = max(n, big)
            if p.wr & c.srcC and not (p.wr == c.srcC and p.passes == c.passes):
                n = max(n, {4: 6, 8: 10}[p.passes])
        if cv and p.srcC & c.wr:
            n = max(n, {4: 3, 8: 7}[p.passes])
    if p.kind == "salu" and ("s", "m0") in p.wr and c.kind == "dma":
        n = max(n, 1)
    if p.sdata and p.sdata & c.wr:
        n = max(n, 2)
    return n

HORIZON = 13

class Asm:
    def __init__(self):
        self.ins = []
        self.vm = []
        self.lg = []
        self.uid = 0
        self.track = True

    def newlabel(self, base):
        self.uid += 1
        return f"L_{base}_{self.uid}"

    def op(self, text, tag=None, counted=True):
        for line in text.split("\n"):
            line = line.strip()
            if not line:
                continue
            i = Ins(line)
            self.ins.append(i)
            if self.track:
                if i.kind in ("vmem", "dma"):
                    self.vm.append((tag, counted))
                elif i.kind == "ds":
                    self.lg.append((tag, counted))
        return self

    __call__ = op

    def label(self, name):
        self.op(name + ":")

    def _n(self, q, tags, cap):
        idx = [k for k, (t, _) in enumerate(q) if t in tags]
        if not idx:
            return None
        last = max(idx)
        n = sum(1 for (_, c) in q[last + 1:] if c)
        return last, min(n, cap)

    def wait(self, vm=(), lg=()):
        if isinstance(vm, (str, tuple)) and not isinstance(vm, list):
            vm = [vm] if vm != () else []
        if isinstance(lg, (str, tuple)) and not isinstance(lg, list):
            lg = [lg] if lg != () else []
        parts = []
        r = self._n(self.vm, vm, 63) if vm else None
        if r is not None:
            parts.append(f"vmcnt({r[1]})")
            self.vm = self.vm[r[0] + 1:]
        r = self._n(self.lg, lg, 15) if lg else None
        if r is not None:
            parts.append(f"lgkmcnt({r[1]})")
            self.lg = self.lg[r[0] + 1:]
        if parts:
            self.op("s_waitcnt " + " ".join(parts))
            return True
        return False

    def wait_all(self, vm=False, lg=False):
        parts = []
        if vm:
            parts.append("vmcnt(0)"); self.vm = []
        if lg:
            parts.append("lgkmcnt(0)"); self.lg = []
        self.op("s_waitcnt " + " ".join(parts))

    def pad(self):
        for _ in range(6):
            changed = self._pad_once()
            if not changed:
                return
        raise RuntimeError("padding did not converge")

    def _pad_once(self):
        ins = self.ins
        entry = {}
        out = []
        changed = False
        def merge(a, b):
            d = {}
            for (p, age) in a + b:
                k = id(p)
                if k not in d or age < d[k][1]:
                    d[k] = (p, age)
            return list(d.values())
        for sweep in range(2):
            state = []
            out = []
            for i in ins:
                if i.kind == "label":
                    state = merge(state, entry.get(i.label, []))
                    out.append(i)
                    continue
                if i.kind == "dir":
                    out.append(i)
                    continue
                miss = 0
                for (p, age) in state:
                    miss = max(miss, need(p, i) - age)
                if miss > 0 and sweep == 1:
                    nop = Ins(f"s_nop {miss - 1}")
                    out.append(nop)
                    changed = True
                if miss > 0:
                    state = [(p, a + miss) for (p, a) in state]
                out.append(i)
                k = i.states()
                state = [(p, a + k) for (p, a) in state if a + k < HORIZON]
                if i.wr or i.srcC or i.sdata:
                    state.append((i, 0))
                if i.kind == "branch":
                    entry[i.target] = merge(entry.get(i.target, []), state)
                    if i.mn == "s_branch":
                        state = []
                if i.mn == "s_endpgm":
                    state = []
        self.ins = out
        return changed

    def text(self):
        return "\n".join((i.text if i.kind == "label" else "    " + i.text) for i in self.ins) + "\n"
```

```python
import sys, math
sys.path.insert(0, "dev")
from asm import Asm

NAME = "interleave_layers__sliding_block__dense_activation_silu__prompt"
KB = 1024
EPOCH, FWQ, FW, FL = 0, 0x1000, 0x2000, 0x4000
FL_STRIDE = 0x2000
FX, FO, FX1, FH, FP, FKV = 0, 0x200, 0x400, 0x600, 0x800, 0x1000
CSQ, CS1, STAMP = 0x30000, 0x40000, 0x50000
WQ, WO, W1T, W2T = 0x100000, 0x400000, 0x500000, 0x780000
ACT, ACT_STRIDE = 0x1000000, 0x400000
X_, XS_, O_, X1_, X1S_, H_, KV_, PX_ = 0, 0x50000, 0x60000, 0xB0000, 0x100000, 0x110000, 0x200000, 0x2C0000
XT, HT = 20480, 55296
OOB = 0x80000000
LCSQ, LCS1, LW, LRED, LKV = 0, 256, 1 * KB, 100 * KB, 112 * KB
LSQ, LSU = 100 * KB, 112 * KB
LDS_BYTES = 160 * KB
QSCALE = math.log2(math.e) / math.sqrt(20.0)
LOG2E = math.log2(math.e)

import struct
def f32(x):
    return "0x%08x" % struct.unpack("<I", struct.pack("<f", x))[0]

def v(i, n=1):
    return f"v{i}" if n == 1 else f"v[{i}:{i+n-1}]"
def a(i, n=1):
    return f"a{i}" if n == 1 else f"a[{i}:{i+n-1}]"
def s(i, n=1):
    return f"s{i}" if n == 1 else f"s[{i}:{i+n-1}]"

STAMP_NAMES = ["t0", "posted", "p1go", "p1end", "kv", "own", "halo", "att", "p2end", "p3go", "p3end", "p4go", "p4end", "hpost", "p5go", "p5end"]

class Cfg:
    stamps = False
    force_safe = False
    force_fallback = False
    p1_ring = 6
    p1_npre = 2
    stop_after = None

WS = 4
SRD_A = 8
SRD_B = 12
SRD_C = 16
KA = 20
sW, sT, sC, sRB, sCB, sNONCE, sLAYER, sFAST, sBUD, sACT, sFL, sTILE0, sEPO, sXCC = range(36, 50)
sHI = 50
sKH = 52
T0 = 54
ST0 = 70
def sT_(i): return s(T0 + i)

(vL16, vXB, vXst, vXst4, vHst, vOlst, vOlld, vSst, vSld4, vSld1, vF32, vFp1, vFp3, vL0, vNon,
 vKr, vKx0, vKx1, vV0, vV1, vLane, vG16, vH16, vF16, vW3) = range(1, 26)
vTMP = 26
RES = 32
vRW = 52
WK = 56
aWO, aW2 = 0, 100

class Gen:
    def __init__(self, cfg):
        self.c = cfg
        self.A = Asm()
        self.tail = []
        self.bgq = []
        self.nstamp = 0

    def stamp(self):
        if self.c.stamps:
            assert self.nstamp < 16
            self.A(f"s_memtime {s(ST0 + 2*self.nstamp, 2)}")
            self.nstamp += 1

    def dump_stamps(self):
        if not self.c.stamps:
            return
        A = self.A
        A("s_waitcnt lgkmcnt(0)")
        A(f"s_lshl_b32 {sT_(0)}, s2, 2\ns_add_u32 {sT_(0)}, {sT_(0)}, {s(sW)}\ns_lshl_b32 {sT_(0)}, {sT_(0)}, 1")
        A(f"s_add_u32 {sT_(0)}, {sT_(0)}, {s(sLAYER)}\ns_lshl_b32 {sT_(0)}, {sT_(0)}, 6\ns_add_u32 {sT_(0)}, {sT_(0)}, {STAMP}")
        for i in range(16):
            A(f"v_mov_b32 {v(vTMP)}, {s(ST0 + 2*i)}")
            A(f"buffer_store_dword {v(vTMP)}, {v(vL0)}, {s(WS,4)}, {sT_(0)} offen offset:{4*i}", counted=False)

    def bg(self, n=1):
        for _ in range(n):
            if self.bgq:
                self.bgq.pop(0)()

    def bg_flush(self):
        while self.bgq:
            self.bgq.pop(0)()

    def dual(self, fn):
        A = self.A
        ls, lj = A.newlabel("safe"), A.newlabel("join")
        A(f"s_cmp_eq_u32 {s(sFAST)}, 0\ns_cbranch_scc1 {ls}")
        vm, lg = list(A.vm), list(A.lg)
        fn("")
        A.label(lj)
        def later():
            keep = (A.vm, A.lg)
            A.vm, A.lg = list(vm), list(lg)
            A.label(ls)
            fn(" sc1")
            A(f"s_branch {lj}")
            A.vm, A.lg = keep
        self.tail.append(later)

    def if_layer0(self, fn):
        A = self.A
        l = A.newlabel("nl0")
        A(f"s_cmp_lg_u32 {s(sLAYER)}, 0\ns_cbranch_scc1 {l}")
        n0, m0 = len(A.vm), len(A.lg)
        fn()
        assert len(A.vm) >= n0 and len(A.lg) >= m0
        A.vm = A.vm[:n0] + [(t, False) for (t, _) in A.vm[n0:]]
        A.lg = A.lg[:m0] + [(t, False) for (t, _) in A.lg[m0:]]
        A.label(l)

    def poll(self, vaddr, soff, imm=0):
        A = self.A
        l, d = A.newlabel("poll"), A.newlabel("polled")
        A.label(l)
        A(f"buffer_load_dword {v(vTMP)}, {v(vaddr)}, {s(WS,4)}, {soff} offen offset:{imm} sc1")
        A.wait_all(vm=True)
        A(f"v_cmp_ne_u32 vcc, {v(vTMP)}, {v(vNon)}")
        A(f"s_cbranch_vccz {d}")
        A(f"s_sub_u32 {s(sBUD)}, {s(sBUD)}, 1")
        A(f"s_cbranch_scc0 {l}")
        A(f"s_mov_b32 {s(sBUD)}, 0")
        A.label(d)

    def post(self, soff, imm, fl, reg=vNon):
        self.A(f"buffer_store_dword {v(reg)}, {v(vL0)}, {s(WS,4)}, {soff} offen offset:{imm}{fl}", tag="flag")

    def dma(self, voff, srd, soff, imm, tag=None, fl=" sc1"):
        self.A(f"buffer_load_dwordx4 {v(voff)}, {s(srd,4)}, {soff} offen offset:{imm}{fl} lds", tag=tag)

    def ld(self, dst, voff, soff, imm, tag=None, n=4):
        self.A(f"buffer_load_dword{'x%d' % n if n > 1 else ''} {dst}, {v(voff)}, {s(WS,4)}, {soff} offen offset:{imm} sc1", tag=tag)

    def st(self, src, voff, soff, imm, fl, tag=None, n=4, srd=WS):
        self.A(f"buffer_store_dword{'x%d' % n if n > 1 else ''} {src}, {v(voff)}, {s(srd,4)}, {soff} offen offset:{imm}{fl}", tag=tag)

    def prologue(self):
        A = self.A
        A(f"s_cmp_ge_u32 s2, 256\ns_cbranch_scc1 L_end")
        A(f"s_load_dwordx16 {s(KA,16)}, s[0:1], 0")
        A(f"s_load_dwordx2 {s(WS,2)}, s[0:1], 64")
        self.stamp()
        t = vTMP
        n_, g_, h_, g1 = WK, WK + 1, WK + 2, WK + 3
        A(f"v_lshrrev_b32 {v(t)}, 6, v0")
        A(f"v_and_b32 {v(vLane)}, 63, v0")
        A(f"v_readfirstlane_b32 {s(sW)}, {v(t)}")
        A(f"s_and_b32 {s(sT)}, s2, 7\ns_lshr_b32 {s(sC)}, s2, 3\ns_lshr_b32 {s(sRB)}, s2, 6\ns_and_b32 {s(sCB)}, {s(sC)}, 7")
        A(f"s_and_b32 {s(sKH)}, {s(sRB)}, 1")
        A(f"s_getreg_b32 {s(sXCC)}, hwreg(HW_REG_XCC_ID, 0, 4)")
        A(f"s_mov_b32 {s(sLAYER)}, 0\ns_mov_b32 {s(sFAST)}, 0\ns_mov_b32 {s(sBUD)}, 0x20000")
        A(f"s_mov_b32 {s(sHI)}, 0\ns_mov_b32 {s(sHI+1)}, -1")
        A(f"s_mul_i32 {s(sACT)}, {s(sT)}, {ACT_STRIDE}\ns_add_u32 {s(sACT)}, {s(sACT)}, {ACT}")
        A(f"s_mul_i32 {s(sFL)}, {s(sT)}, {FL_STRIDE}\ns_add_u32 {s(sFL)}, {s(sFL)}, {FL}")
        A(f"s_bfe_u32 {sT_(0)}, {s(sC)}, 0x20002\ns_mul_i32 {sT_(0)}, {sT_(0)}, 27")
        A(f"s_and_b32 {sT_(1)}, {s(sC)}, 3\ns_mul_i32 {sT_(1)}, {sT_(1)}, 7\ns_add_u32 {s(sTILE0)}, {sT_(0)}, {sT_(1)}")
        A(f"v_and_b32 {v(n_)}, 15, {v(vLane)}")
        A(f"v_lshrrev_b32 {v(g_)}, 4, {v(vLane)}")
        A(f"v_lshrrev_b32 {v(h_)}, 5, {v(vLane)}")
        A(f"v_and_b32 {v(g1)}, 1, {v(g_)}")
        A(f"v_lshlrev_b32 {v(vL16)}, 4, {v(vLane)}")
        xa = WK + 4
        A(f"v_mul_u32_u24 {v(xa)}, 1280, {v(n_)}")
        A(f"v_lshl_add_u32 {v(xa)}, {v(g_)}, 3, {v(xa)}")
        A(f"s_lshl_b32 {sT_(0)}, {s(sT)}, 4\ns_lshl_b32 {sT_(1)}, {s(sRB)}, 2\ns_add_u32 {sT_(0)}, {sT_(0)}, {sT_(1)}")
        A(f"s_add_u32 {sT_(0)}, {sT_(0)}, {s(sW)}\ns_mul_i32 {sT_(0)}, {sT_(0)}, {16*1280}")
        A(f"s_mul_i32 {sT_(1)}, {s(sCB)}, 160\ns_add_u32 {sT_(0)}, {sT_(0)}, {sT_(1)}")
        qa = WK + 5
        A(f"s_mul_i32 {sT_(2)}, {s(sW)}, 192")
        for p in range(3):
            i_, r_, m_ = t, t + 1, t + 2
            A(f"v_add_u32 {v(i_)}, {sT_(2)}, {v(vLane)}")
            if p:
                A(f"v_add_u32 {v(i_)}, {64*p}, {v(i_)}")
            A(f"v_mul_u32_u24 {v(r_)}, 7282, {v(i_)}\nv_lshrrev_b32 {v(r_)}, 16, {v(r_)}")
            A(f"v_mul_u32_u24 {v(m_)}, 9, {v(r_)}\nv_sub_u32 {v(i_)}, {v(i_)}, {v(m_)}")
            A(f"v_mul_u32_u24 {v(m_)}, 11, {v(i_)}\nv_lshrrev_b32 {v(m_)}, 5, {v(m_)}")
            A(f"v_mul_u32_u24 {v(r_)}, 3840, {v(r_)}")
            A(f"v_mul_u32_u24 {v(m_)}, {1280-48}, {v(m_)}")
            A(f"v_lshlrev_b32 {v(i_)}, 4, {v(i_)}")
            A(f"v_add3_u32 {v(qa+p)}, {v(r_)}, {v(m_)}, {v(i_)}")
        A(f"s_mul_i32 {sT_(3)}, {s(sT)}, {80*3840}\ns_mul_i32 {sT_(4)}, {s(sC)}, 40\ns_add_u32 {sT_(3)}, {sT_(3)}, {sT_(4)}")
        A(f"s_and_b32 {sT_(4)}, {s(sC)}, 1\ns_lshl_b32 {sT_(4)}, {sT_(4)}, 3\ns_sub_u32 {sT_(3)}, {sT_(3)}, {sT_(4)}")
        A("s_waitcnt lgkmcnt(0)")
        A(f"s_load_dword {s(sEPO)}, {s(WS,2)}, {EPOCH}")
        A(f"s_mov_b32 {s(SRD_A)}, {s(KA)}\ns_mov_b32 {s(SRD_A+1)}, {s(KA+1)}\ns_mov_b32 {s(SRD_A+2)}, {2048*1280}\ns_mov_b32 {s(SRD_A+3)}, 0x20000")
        xr = WK + 8
        for ft in range(5):
            A(f"buffer_load_dwordx2 {v(xr+2*ft,2)}, {v(xa)}, {s(SRD_A,4)}, {sT_(0)} offen offset:{32*ft}", tag="x0")
        A(f"s_mov_b32 {s(SRD_B)}, {s(KA+2)}\ns_mov_b32 {s(SRD_B+1)}, {s(KA+3)}\ns_mov_b32 {s(SRD_B+2)}, {640*3840}\ns_mov_b32 {s(SRD_B+3)}, 0x20000")
        A(f"s_mov_b32 {s(WS+2)}, 0x10000000\ns_mov_b32 {s(WS+3)}, 0x20000")
        A(f"s_mul_i32 {sT_(5)}, {s(sW)}, 3072\ns_add_u32 {sT_(5)}, {sT_(5)}, {LSQ}")
        for p in range(3):
            A(f"s_add_u32 m0, {sT_(5)}, {1024*p}")
            self.dma(qa + p, SRD_B, sT_(3), 0, tag="wqp", fl="")
        A(f"s_getpc_b64 {s(T0+6,2)}")
        A(f"s_and_b32 {sT_(8)}, {s(sC)}, 1\ns_lshl_b32 {sT_(8)}, {sT_(8)}, 15")
        A(f"v_lshlrev_b32 {v(t)}, 7, v0\nv_add_u32 {v(t)}, {sT_(8)}, {v(t)}")
        A(f"v_min_u32 {v(t)}, CODE_BYTES, {v(t)}")
        A(f"global_load_dword {v(t+1)}, {v(t)}, {s(T0+6,2)}", tag="code")
        uPTR, uSTR, uROW, uCOL, uDST, uSTEP, uTYP = T0 + 6, T0 + 8, T0 + 9, T0 + 10, T0 + 11, T0 + 12, T0 + 13
        lo, l2, lj = A.newlabel("uwo"), A.newlabel("uw2"), A.newlabel("uj")
        A(f"s_cmp_ge_u32 s2, 108\ns_cbranch_scc1 {lo}")
        A(f"s_mul_i32 {s(uROW)}, s2, 2428\ns_lshr_b32 {s(uROW)}, {s(uROW)}, 16")
        A(f"s_mul_i32 {s(uCOL)}, {s(uROW)}, 27\ns_sub_u32 {s(uCOL)}, s2, {s(uCOL)}")
        A(f"s_mov_b32 {s(SRD_C)}, {s(KA+8)}\ns_mov_b32 {s(SRD_C+1)}, {s(KA+9)}\ns_mov_b32 {s(SRD_C+2)}, {640*3456}")
        A(f"s_mov_b32 {s(uSTR)}, 3456\ns_mov_b32 {s(uTYP)}, 0\ns_mov_b32 {s(uSTEP)}, {108*KB}")
        A(f"s_mul_i32 {s(uDST)}, {s(uROW)}, {5*108}\ns_lshl_b32 {sT_(14)}, {s(uCOL)}, 2\ns_add_u32 {sT_(14)}, {sT_(14)}, {s(sW)}")
        A(f"s_add_u32 {s(uDST)}, {s(uDST)}, {sT_(14)}\ns_lshl_b32 {s(uDST)}, {s(uDST)}, 10\ns_add_u32 {s(uDST)}, {s(uDST)}, {W1T}")
        A(f"s_mul_i32 {sT_(15)}, {s(uROW)}, {1792*4}\ns_lshl_b32 {sT_(14)}, {sT_(14)}, 6\ns_add_u32 {sT_(15)}, {sT_(15)}, {sT_(14)}\ns_add_u32 {sT_(15)}, {sT_(15)}, {CS1}")
        A(f"s_mul_i32 {s(uROW)}, {s(uROW)}, 160")
        A(f"s_branch {lj}")
        A.label(lo)
        A(f"s_cmp_ge_u32 s2, 148\ns_cbranch_scc1 {l2}")
        A(f"s_sub_u32 {s(uCOL)}, s2, 108\ns_mul_i32 {s(uROW)}, {s(uCOL)}, 6554\ns_lshr_b32 {s(uROW)}, {s(uROW)}, 16")
        A(f"s_mul_i32 {sT_(14)}, {s(uROW)}, 10\ns_sub_u32 {s(uCOL)}, {s(uCOL)}, {sT_(14)}")
        A(f"s_mov_b32 {s(SRD_C)}, {s(KA+4)}\ns_mov_b32 {s(SRD_C+1)}, {s(KA+5)}\ns_mov_b32 {s(SRD_C+2)}, {640*1280}")
        A(f"s_mov_b32 {s(uSTR)}, 1280\ns_mov_b32 {s(uTYP)}, 1\ns_mov_b32 {s(uSTEP)}, {KB}")
        A(f"s_lshl_b32 {sT_(14)}, {s(uCOL)}, 2\ns_add_u32 {sT_(14)}, {sT_(14)}, {s(sW)}\ns_mul_i32 {sT_(14)}, {sT_(14)}, 20")
        A(f"s_mul_i32 {s(uDST)}, {s(uROW)}, 5\ns_add_u32 {s(uDST)}, {s(uDST)}, {sT_(14)}\ns_lshl_b32 {s(uDST)}, {s(uDST)}, 10\ns_add_u32 {s(uDST)}, {s(uDST)}, {WO}")
        A(f"s_mov_b32 {sT_(15)}, 0")
        A(f"s_mul_i32 {s(uROW)}, {s(uROW)}, 160")
        A(f"s_branch {lj}")
        A.label(l2)
        A(f"s_sub_u32 {s(uCOL)}, s2, 148\ns_mul_i32 {s(uROW)}, {s(uCOL)}, 6554\ns_lshr_b32 {s(uROW)}, {s(uROW)}, 16")
        A(f"s_mul_i32 {sT_(14)}, {s(uROW)}, 10\ns_sub_u32 {s(uCOL)}, {s(uCOL)}, {sT_(14)}")
        A(f"s_mov_b32 {s(SRD_C)}, {s(KA+10)}\ns_mov_b32 {s(SRD_C+1)}, {s(KA+11)}\ns_mov_b32 {s(SRD_C+2)}, {1728*1280}")
        A(f"s_cmp_ge_u32 s2, 238\ns_cselect_b32 {s(uTYP)}, 3, 2")
        A(f"s_mov_b32 {s(uSTR)}, 1280\ns_mov_b32 {s(uSTEP)}, {KB}")
        A(f"s_lshl_b32 {sT_(14)}, {s(uCOL)}, 2\ns_add_u32 {sT_(14)}, {sT_(14)}, {s(sW)}\ns_mul_i32 {sT_(14)}, {sT_(14)}, 54")
        A(f"s_mul_i32 {s(uDST)}, {s(uROW)}, 6\ns_add_u32 {s(uDST)}, {s(uDST)}, {sT_(14)}\ns_lshl_b32 {s(uDST)}, {s(uDST)}, 10\ns_add_u32 {s(uDST)}, {s(uDST)}, {W2T}")
        A(f"s_mov_b32 {sT_(15)}, 0")
        A(f"s_mul_i32 {s(uROW)}, {s(uROW)}, 192")
        A.label(lj)
        A(f"s_mov_b32 {s(SRD_C+3)}, 0x20000")
        ua = WK + 18
        A(f"v_lshrrev_b32 {v(ua)}, 3, {v(vLane)}\nv_mul_lo_u32 {v(ua)}, {v(ua)}, {s(uSTR)}")
        A(f"v_and_b32 {v(t+2)}, 7, {v(vLane)}\nv_lshl_add_u32 {v(ua)}, {v(t+2)}, 4, {v(ua)}")
        A(f"s_lshl_b32 {sT_(14)}, {s(sW)}, 3\ns_add_u32 {s(uROW)}, {s(uROW)}, {sT_(14)}\ns_mul_i32 {s(uROW)}, {s(uROW)}, {s(uSTR)}")
        A(f"s_lshl_b32 {s(uCOL)}, {s(uCOL)}, 7\ns_add_u32 {s(uROW)}, {s(uROW)}, {s(uCOL)}")
        A(f"s_lshl_b32 {s(uSTR)}, {s(uSTR)}, 5")
        A(f"s_lshl_b32 {sT_(14)}, {s(sW)}, 10\ns_add_u32 {sT_(14)}, {sT_(14)}, {LSU}")
        for p in range(6):
            A(f"s_add_u32 m0, {sT_(14)}, {4096*p}")
            self.dma(ua, SRD_C, s(uROW), 0, tag="unit", fl="")
            A(f"s_add_u32 {s(uROW)}, {s(uROW)}, {s(uSTR)}")
        n16 = WK + 19
        A(f"v_lshlrev_b32 {v(n16)}, 4, {v(n_)}")
        A(f"v_lshl_add_u32 {v(t+2)}, {v(h_)}, 8, {v(n16)}")
        A(f"v_mul_u32_u24 {v(t+3)}, {XT}, {v(g1)}\nv_add_u32 {v(vXB)}, {v(t+3)}, {v(t+2)}")
        A(f"v_lshl_add_u32 {v(vXst)}, {v(g1)}, 9, {v(t+2)}")
        A(f"v_lshl_add_u32 {v(vXst4)}, {v(g1)}, 3, {v(t+2)}")
        A(f"v_mul_u32_u24 {v(vHst)}, {HT}, {v(g1)}\nv_add_u32 {v(vHst)}, {v(vHst)}, {v(t+2)}")
        A(f"v_lshl_add_u32 {v(vOlst)}, {v(n_)}, 3, {v(t+3)}\nv_lshl_add_u32 {v(vOlst)}, {v(h_)}, 31, {v(vOlst)}")
        A(f"v_lshlrev_b32 {v(vOlld)}, 3, {v(n_)}\nv_lshl_add_u32 {v(vOlld)}, {v(g_)}, 8, {v(vOlld)}")
        A(f"v_lshlrev_b32 {v(t+2)}, 5, {v(n_)}\nv_lshl_add_u32 {v(t+3)}, {v(g1)}, 9, {v(t+2)}")
        A(f"v_lshl_add_u32 {v(vSst)}, {v(h_)}, 31, {v(t+3)}")
        A(f"v_lshl_add_u32 {v(vSld4)}, {v(h_)}, 4, {v(t+3)}")
        A(f"v_lshl_add_u32 {v(vSld1)}, {v(g1)}, 10, {v(t+2)}\nv_lshl_add_u32 {v(vSld1)}, {v(h_)}, 9, {v(vSld1)}")
        key = WK + 20
        A(f"v_and_b32 {v(key)}, 31, {v(vLane)}\nv_lshlrev_b32 {v(vF32)}, 2, {v(key)}")
        A(f"v_lshlrev_b32 {v(vF16)}, 2, {v(n_)}")
        A(f"s_lshl_b32 {sT_(0)}, {s(sW)}, 6\ns_lshl_b32 {sT_(1)}, {s(sW)}, 7\ns_sub_u32 {sT_(1)}, 448, {sT_(1)}")
        A(f"v_mul_u32_u24 {v(vFp1)}, {sT_(1)}, {v(g1)}\nv_add3_u32 {v(vFp1)}, {v(vFp1)}, {sT_(0)}, {v(vF16)}")
        A(f"v_and_b32 {v(t+2)}, 7, {v(vLane)}\nv_lshlrev_b32 {v(t+2)}, 2, {v(t+2)}")
        A(f"v_bfe_u32 {v(t+3)}, {v(vLane)}, 3, 1\nv_lshl_add_u32 {v(vFp3)}, {v(t+3)}, 7, {v(t+2)}")
        A(f"v_min_u32 {v(vL0)}, 1, {v(vLane)}\nv_lshlrev_b32 {v(vL0)}, 31, {v(vL0)}")
        A(f"v_lshlrev_b32 {v(vG16)}, 4, {v(g_)}\nv_lshlrev_b32 {v(vH16)}, 4, {v(h_)}")
        A(f"s_cmp_eq_u32 {s(sW)}, 3\ns_cselect_b32 {sT_(0)}, {OOB}, 0\nv_add_u32 {v(vW3)}, {sT_(0)}, {v(vL16)}")
        A(f"v_add_u32 {v(vKr)}, {LKV}, {v(vL16)}")
        A(f"v_lshlrev_b32 {v(t+2)}, 2, {v(h_)}\nv_xor_b32 {v(t+2)}, {v(t+2)}, {v(key)}\nv_lshlrev_b32 {v(t+2)}, 4, {v(t+2)}")
        A(f"v_lshl_add_u32 {v(t+2)}, {v(h_)}, 9, {v(t+2)}")
        A(f"v_add_u32 {v(vKx0)}, {LKV+1024}, {v(t+2)}")
        A(f"v_xor_b32 {v(t+2)}, 128, {v(t+2)}\nv_add_u32 {v(vKx1)}, {LKV+2048}, {v(t+2)}")
        tab = [(1,0),(1,1),(0,1),(3,0),(2,1),(3,1),(3,1),(3,1)]
        tabv = sum(((sb << 1) | b) << (4*i) for i, (sb, b) in enumerate(tab))
        cq, r_ = WK + 21, WK + 22
        A(f"v_and_b32 {v(cq)}, 3, {v(vLane)}\nv_lshl_add_u32 {v(cq)}, {v(g1)}, 2, {v(cq)}")
        A(f"v_bfe_u32 {v(r_)}, {v(vLane)}, 2, 2")
        A(f"v_lshlrev_b32 {v(t+2)}, 2, {v(cq)}\ns_mov_b32 {sT_(0)}, {tabv}\nv_lshrrev_b32 {v(t+2)}, {v(t+2)}, {sT_(0)}")
        A(f"v_bfe_u32 {v(t+3)}, {v(t+2)}, 1, 2\nv_and_b32 {v(t+2)}, 1, {v(t+2)}")
        A(f"v_xor_b32 {v(t+4)}, {v(t+3)}, {v(h_)}\nv_lshl_add_u32 {v(t+4)}, {v(t+4)}, 2, {v(r_)}\nv_lshlrev_b32 {v(t+4)}, 4, {v(t+4)}")
        A(f"v_lshl_add_u32 {v(t+4)}, {v(t+3)}, 9, {v(t+4)}\nv_lshl_add_u32 {v(t+4)}, {v(t+2)}, 3, {v(t+4)}")
        A(f"v_add_u32 {v(vV0)}, {LKV+1024}, {v(t+4)}\nv_xor_b32 {v(vV1)}, 128, {v(vV0)}")
        for p in range(4):
            A(f"s_add_u32 {sT_(0)}, {s(sW)}, {p+1}\ns_and_b32 {sT_(0)}, {sT_(0)}, 3\ns_mul_i32 {sT_(0)}, {sT_(0)}, 15360")
            A(f"s_add_u32 {sT_(0)}, {sT_(0)}, {LRED + (5120*p if p < 3 else 0)}\nv_add_u32 {v(vRW+p)}, {sT_(0)}, {v(vL16)}")
        qtr, utr, utr4 = WK + 23, WK + 24, WK + 25
        A(f"v_lshl_add_u32 {v(t+2)}, {v(h_)}, 3, {v(r_)}\nv_mul_u32_u24 {v(qtr)}, 144, {v(t+2)}")
        A(f"s_and_b32 {sT_(0)}, {s(sW)}, 1\ns_mul_i32 {sT_(1)}, {sT_(0)}, 48\ns_mul_i32 {sT_(2)}, {sT_(0)}, 24\ns_add_u32 {sT_(2)}, {sT_(2)}, 56")
        A(f"v_mov_b32 {v(t+2)}, {sT_(1)}\nv_mov_b32 {v(t+3)}, {sT_(2)}\nv_cmp_lt_u32 vcc, 4, {v(cq)}")
        A(f"v_cndmask_b32 {v(t+2)}, {v(t+2)}, {v(t+3)}, vcc\nv_lshl_add_u32 {v(t+2)}, {v(cq)}, 3, {v(t+2)}")
        A(f"s_add_u32 {sT_(4)}, {sT_(4)}, {LSQ}\nv_add3_u32 {v(qtr)}, {v(qtr)}, {v(t+2)}, {sT_(4)}")
        A(f"v_and_b32 {v(t+2)}, 3, {v(vLane)}\nv_lshlrev_b32 {v(t+2)}, 3, {v(t+2)}\nv_lshl_add_u32 {v(t+2)}, {v(r_)}, 7, {v(t+2)}")
        A(f"s_lshl_b32 {sT_(0)}, {s(sW)}, 5\ns_add_u32 {sT_(0)}, {sT_(0)}, {LSU}\nv_add_u32 {v(t+2)}, {sT_(0)}, {v(t+2)}")
        A(f"s_cmp_eq_u32 {s(uTYP)}, 1\ns_cselect_b32 {sT_(0)}, 20, 16\ns_lshl_b32 {sT_(0)}, {sT_(0)}, 7")
        A(f"v_mul_u32_u24 {v(t+3)}, {sT_(0)}, {v(h_)}\nv_lshl_add_u32 {v(t+3)}, {v(g1)}, 10, {v(t+3)}\nv_add_u32 {v(utr)}, {v(t+2)}, {v(t+3)}")
        A(f"v_mul_u32_u24 {v(t+3)}, {40*128}, {v(g_)}\nv_add_u32 {v(utr4)}, {v(t+2)}, {v(t+3)}")
        ones = WK + 28
        for i in range(4):
            A(f"v_mov_b32 {v(ones+i)}, 0x3f803f80")
        A("s_waitcnt lgkmcnt(0)")
        A(f"s_add_u32 {s(sNONCE)}, {s(sEPO)}, 1\ns_mul_i32 {s(sNONCE)}, {s(sNONCE)}, 0x9e3779b1\ns_lshl_b32 {s(sNONCE)}, {s(sNONCE)}, 4\ns_xor_b32 {s(sNONCE)}, {s(sNONCE)}, 0x5bd1e990")
        A(f"v_mov_b32 {v(vNon)}, {s(sNONCE)}")
        A.wait(vm="x0")
        for ft in range(5):
            for d in range(2):
                A(f"v_lshlrev_b32 {v(RES+4*ft+2*d)}, 16, {v(xr+2*ft+d)}")
                A(f"v_and_b32 {v(RES+4*ft+2*d+1)}, 0xffff0000, {v(xr+2*ft+d)}")
        self.pub_offsets(X_, XS_, FX, 0)
        self.publish(" sc1", WK + 64, post=False)
        A.wait(vm="wqp")
        A("s_barrier")
        lq = A.newlabel("noq")
        A(f"s_cmp_ge_u32 {s(sW)}, 2\ns_cbranch_scc1 {lq}")
        fr, cs = WK + 96, WK + 128
        for st_ in range(5):
            for u in range(2):
                A(f"ds_read_b64_tr_b16 {v(fr+4*st_+2*u,2)}, {v(qtr)} offset:{(16*st_+4*u)*144}")
        A(f"s_mul_i32 {sT_(4)}, {s(sC)}, {80*KB}\ns_mul_i32 {sT_(5)}, {s(sT)}, {10*KB}\ns_add_u32 {sT_(4)}, {sT_(4)}, {sT_(5)}")
        A(f"s_lshl_b32 {sT_(5)}, {s(sW)}, 10\ns_add_u32 {sT_(4)}, {sT_(4)}, {sT_(5)}\ns_add_u32 {sT_(4)}, {sT_(4)}, {WQ}")
        A.wait_all(lg=True)
        for st_ in range(5):
            self.st(v(fr+4*st_,4), vL16, sT_(4), 2048*(st_ % 2), " sc1")
            if st_ % 2:
                A(f"s_add_u32 {sT_(4)}, {sT_(4)}, 4096")
            A(f"v_mfma_f32_32x32x16_bf16 {v(cs,16)}, {v(fr+4*st_,4)}, {v(ones,4)}, {v(cs,16) if st_ else 0}")
        A(f"s_lshl_b32 {sT_(4)}, s2, 0\ns_lshl_b32 {sT_(4)}, {sT_(4)}, 8\ns_lshl_b32 {sT_(5)}, {s(sW)}, 7\ns_add_u32 {sT_(4)}, {sT_(4)}, {sT_(5)}\ns_add_u32 {sT_(4)}, {sT_(4)}, {CSQ}")
        A(f"v_min_u32 {v(t+2)}, 1, {v(key)}\nv_lshl_add_u32 {v(t+2)}, {v(t+2)}, 31, {v(vH16)}")
        for i in range(4):
            self.st(v(cs+4*i,4), t+2, sT_(4), 32*i, " sc1")
        A(f"s_lshl_b32 {sT_(4)}, {s(sC)}, 7\ns_lshl_b32 {sT_(5)}, {s(sT)}, 1\ns_add_u32 {sT_(5)}, {sT_(5)}, {s(sW)}\ns_lshl_b32 {sT_(5)}, {sT_(5)}, 2")
        A(f"s_add_u32 {sT_(4)}, {sT_(4)}, {sT_(5)}\ns_add_u32 {sT_(4)}, {sT_(4)}, {FWQ}")
        A.wait_all(vm=True)
        self.post(sT_(4), 0, " sc1")
        A.label(lq)
        A("s_waitcnt vmcnt(1)")
        lq2 = A.newlabel("q2")
        A(f"s_cmp_lt_u32 {s(sW)}, 2\ns_cbranch_scc1 {lq2}")
        A.wait_all(vm=True)
        A.label(lq2)
        self.post(sT_(2), 0, " sc1")
        self.stamp()
        A("s_barrier")
        lu, lwo, lst = A.newlabel("nounit"), A.newlabel("trwo"), A.newlabel("trst")
        A(f"s_cmp_eq_u32 {s(uTYP)}, 3\ns_cbranch_scc1 {lu}")
        A(f"s_cmp_eq_u32 {s(uTYP)}, 1\ns_cbranch_scc1 {lwo}")
        for st_ in range(6):
            for u in range(2):
                A(f"ds_read_b64_tr_b16 {v(fr+4*st_+2*u,2)}, {v(utr)} offset:{(32*st_+4*u)*128}")
        A(f"s_branch {lst}")
        A.label(lwo)
        for st_ in range(4):
            for u in range(2):
                A(f"ds_read_b64_tr_b16 {v(fr+4*st_+2*u,2)}, {v(utr)} offset:{(40*st_+4*u)*128}")
        for u in range(2):
            A(f"ds_read_b64_tr_b16 {v(fr+16+2*u,2)}, {v(utr4)} offset:{(16+20*u)*128}")
        A.label(lst)
        A.wait_all(lg=True)
        for st_ in range(5):
            self.st(v(fr+4*st_,4), vL16, s(uDST), 0, " sc1")
            A(f"s_add_u32 {s(uDST)}, {s(uDST)}, {s(uSTEP)}")
            A(f"v_mfma_f32_16x16x32_bf16 {v(cs,4)}, {v(fr+4*st_,4)}, {v(ones,4)}, {v(cs,4) if st_ else 0}")
        l6 = A.newlabel("no6")
        A(f"s_cmp_lg_u32 {s(uTYP)}, 2\ns_cbranch_scc1 {l6}")
        self.st(v(fr+20,4), vL16, s(uDST), 0, " sc1")
        A.label(l6)
        A(f"s_cmp_lg_u32 {s(uTYP)}, 0\ns_cbranch_scc1 {lu}")
        A(f"v_min_u32 {v(t+2)}, 1, {v(n_)}\nv_lshl_add_u32 {v(t+2)}, {v(t+2)}, 31, {v(vG16)}")
        self.st(v(cs,4), t+2, sT_(15), 0, " sc1")
        A.label(lu)
        A.vm = []
        A(f"s_mov_b32 {s(SRD_A)}, {s(KA+12)}\ns_mov_b32 {s(SRD_A+1)}, {s(KA+13)}")

    def pub_offsets(self, xo, so, fo, nxt):
        A = self.A
        A(f"s_lshl_b32 {sT_(2)}, {s(sRB)}, 2\ns_add_u32 {sT_(2)}, {sT_(2)}, {s(sW)}")
        A(f"s_mul_i32 {sT_(0)}, {sT_(2)}, {XT}\ns_mul_i32 {sT_(1)}, {s(sCB)}, 2560\ns_add_u32 {sT_(0)}, {sT_(0)}, {sT_(1)}")
        A(f"s_add_u32 {sT_(0)}, {sT_(0)}, {s(sACT)}\ns_add_u32 {sT_(0)}, {sT_(0)}, {xo + nxt*8*ACT_STRIDE}")
        A(f"s_lshl_b32 {sT_(1)}, {sT_(2)}, 8\ns_add_u32 {sT_(1)}, {sT_(1)}, {s(sCB)}\ns_lshl_b32 {sT_(1)}, {sT_(1)}, 2")
        A(f"s_add_u32 {sT_(1)}, {sT_(1)}, {s(sACT)}\ns_add_u32 {sT_(1)}, {sT_(1)}, {so + nxt*8*ACT_STRIDE}")
        A(f"s_lshl_b32 {sT_(2)}, {sT_(2)}, 3\ns_add_u32 {sT_(2)}, {sT_(2)}, {s(sCB)}\ns_lshl_b32 {sT_(2)}, {sT_(2)}, 2")
        A(f"s_add_u32 {sT_(2)}, {sT_(2)}, {s(sFL)}\ns_add_u32 {sT_(2)}, {sT_(2)}, {fo + nxt*8*FL_STRIDE}")

    def pack_res(self, d):
        A = self.A
        for i in range(10):
            A(f"v_cvt_pk_bf16_f32 {v(d+i)}, {v(RES+2*i)}, {v(RES+2*i+1)}")
        for p in range(2):
            for i in range(2):
                A(f"v_permlane16_swap_b32 {v(d+4*p+i)}, {v(d+4*p+2+i)}")

    def publish(self, fl, d, post=True):
        A = self.A
        self.pack_res(d)
        self.st(v(d+8,2), vXst4, sT_(0), 2048, fl, n=2)
        self.st(v(d,4), vXst, sT_(0), 0, fl)
        self.st(v(d+4,4), vXst, sT_(0), 1024, fl)
        s1, s2 = d + 12, d + 14
        A(f"v_pk_add_f32 {v(s1,2)}, {v(RES,2)}, {v(RES+2,2)}")
        A(f"v_pk_mul_f32 {v(s2,2)}, {v(RES,2)}, {v(RES,2)}")
        for i in range(1, 10):
            if i > 1:
                A(f"v_pk_add_f32 {v(s1,2)}, {v(s1,2)}, {v(RES+2*i,2)}")
            A(f"v_pk_fma_f32 {v(s2,2)}, {v(RES+2*i,2)}, {v(RES+2*i,2)}, {v(s2,2)}")
        A(f"v_add_f32 {v(s1)}, {v(s1)}, {v(s1+1)}\nv_add_f32 {v(s2)}, {v(s2)}, {v(s2+1)}")
        A(f"v_permlane16_swap_b32 {v(s1)}, {v(s2)}")
        A(f"v_add_f32 {v(s1)}, {v(s1)}, {v(s2)}\nv_mov_b32 {v(s2)}, {v(s1)}")
        A(f"v_permlane32_swap_b32 {v(s1)}, {v(s2)}")
        A(f"v_add_f32 {v(s1)}, {v(s1)}, {v(s2)}")
        self.st(v(s1), vSst, sT_(1), 0, fl, n=1)
        if post:
            A.wait_all(vm=True)
            self.post(sT_(2), 0, fl)

    def ln_scalars(self, s1, s2, nm, rs):
        A = self.A
        return [
            lambda: A(f"v_mul_f32 {v(nm)}, {f32(-1/640)}, {v(s1)}"),
            lambda: A(f"v_mul_f32 {v(s2)}, {f32(1/640)}, {v(s2)}"),
            lambda: A(f"v_fma_f32 {v(s2)}, -{v(nm)}, {v(nm)}, {v(s2)}"),
            lambda: A(f"v_max_f32 {v(s2)}, 0, {v(s2)}"),
            lambda: A(f"v_add_f32 {v(s2)}, {f32(1e-5)}, {v(s2)}"),
            lambda: A(f"v_rsq_f32 {v(rs)}, {v(s2)}"),
        ]

    def wq_dma(self, q, tag):
        A = self.A
        A(f"s_mul_i32 {sT_(8)}, {s(sC)}, {80*KB}\ns_lshl_b32 {sT_(9)}, {s(sW)}, 12\ns_add_u32 {sT_(8)}, {sT_(8)}, {sT_(9)}")
        A(f"s_add_u32 {sT_(8)}, {sT_(8)}, {WQ + 16*KB*q}\ns_add_u32 m0, {sT_(9)}, {LW + 16*KB*q}")
        for i in range(4):
            self.dma(vL16, WS, sT_(8), 1024*i, tag=tag)

    def p1(self):
        A, c = self.A, self.c
        R = c.p1_ring
        ACC, AF, RING, MSK, SC = WK, WK + 64, WK + 80, WK + 136, WK + 168
        LB0, LB1 = WK + 176, WK + 177
        self.MSK = MSK
        assert 8*R <= 56
        A(f"v_add_u32 {v(LB0)}, {LW}, {v(vL16)}\nv_add_u32 {v(LB1)}, {LW + 40*KB}, {v(vL16)}")
        sB = [T0 + 0, T0 + 1]
        A(f"s_mul_i32 {s(sB[0])}, {s(sW)}, {2*XT}\ns_sub_u32 {s(sB[1])}, {14*XT}, {s(sB[0])}")
        A(f"s_add_u32 {s(sB[0])}, {s(sB[0])}, {s(sACT)}\ns_add_u32 {s(sB[1])}, {s(sB[1])}, {s(sACT)}")
        A(f"s_lshl_b32 {sT_(2)}, {s(sW)}, 11\ns_sub_u32 {sT_(3)}, {14*KB}, {sT_(2)}\ns_add_u32 {sT_(4)}, {s(sACT)}, {XS_}")
        A(f"s_add_u32 {sT_(2)}, {sT_(2)}, {sT_(4)}\ns_add_u32 {sT_(3)}, {sT_(3)}, {sT_(4)}")
        self.poll(vFp1, s(sFL), FX)
        csr = MSK + 16
        def first():
            A(f"s_lshl_b32 {sT_(4)}, {s(sC)}, 7\ns_add_u32 {sT_(4)}, {sT_(4)}, {FWQ}")
            self.poll(vF16, sT_(4))
            for q in range(c.p1_npre):
                self.wq_dma(q, None)
            A(f"s_lshl_b32 {sT_(4)}, {s(sC)}, 11\ns_add_u32 {sT_(4)}, {sT_(4)}, {CSQ}\nv_lshlrev_b32 {v(vTMP)}, 2, {v(vLane)}")
            for i in range(8):
                self.ld(v(csr+i), vTMP, sT_(4), 256*i, n=1)
        self.if_layer0(first)
        self.stamp()
        for b in range(2):
            for i in range(2):
                self.ld(v(MSK+8*b+4*i,4), vSld1, sT_(2+b), 16*i, tag="stats")
        def ldB(b, st_):
            if st_ % 8 == 0 and st_:
                A(f"s_add_u32 {s(sB[b])}, {s(sB[b])}, 4096")
            self.ld(v(RING + 8*(st_ % R) + 4*b, 4), vXB, s(sB[b]), 512*(st_ % 8), tag=("B", st_))
        def rdA(T, st_):
            o = (2*st_ + T) * KB
            base, o = (LB0, o) if o < 40*KB else (LB1, o - 40*KB)
            A(f"ds_read_b128 {v(AF + 8*(st_ % 2) + 4*T, 4)}, {v(base)} offset:{o}", tag=("A", st_))
        for st_ in range(R):
            ldB(1, st_); ldB(0, st_)
        A.wait(vm="stats")
        def cs_first():
            for i in range(1, 8):
                A(f"v_add_f32 {v(csr)}, {v(csr)}, {v(csr+i)}")
            A(f"ds_write_b32 {v(vTMP)}, {v(csr)} offset:{LCSQ}")
            A(f"s_lshl_b32 {sT_(4)}, s2, 2\ns_add_u32 {sT_(4)}, {sT_(4)}, {FW}\nv_add_u32 {v(vTMP+1)}, {s(sXCC)}, {v(vNon)}")
        self.if_layer0(cs_first)
        A("s_barrier")
        rdA(0, 0); rdA(1, 0)
        def fw_post():
            l = A.newlabel("nofw")
            A(f"s_cmp_lg_u32 {s(sW)}, 0\ns_cbranch_scc1 {l}")
            self.post(sT_(4), 0, " sc1", reg=vTMP+1)
            A.label(l)
        self.if_layer0(fw_post)
        q = []
        for b in range(2):
            r = MSK + 8*b
            for (x, y) in ((0,4),(1,5),(2,6),(3,7),(0,1),(2,3),(0,2)):
                q.append(lambda r=r, x=x, y=y: A(f"v_add_f32 {v(r+x)}, {v(r+x)}, {v(r+y)}"))
            q.append(lambda r=r: A(f"v_mov_b32 {v(r+1)}, {v(r)}"))
            q.append(lambda r=r: A(f"v_permlane32_swap_b32 {v(r)}, {v(r+1)}"))
            q += self.ln_scalars(r, r+1, SC+4*b, SC+4*b+1)
            q.append(lambda b=b: A(f"v_mul_f32 {v(SC+4*b+2)}, {f32(QSCALE)}, {v(SC+4*b+1)}"))
            q.append(lambda b=b: A(f"v_cndmask_b32 {v(SC+4*b+3)}, {v(SC+4*b+2)}, 0, {s(sHI,2)}"))
        dq = vTMP + 2
        q.append(lambda: A(f"v_lshrrev_b32 {v(dq)}, 2, {v(vF32)}\nv_lshrrev_b32 {v(dq+1)}, 2, {v(vH16)}"))
        q.append(lambda: A(f"v_sub_u32 {v(dq)}, {v(dq)}, {v(dq+1)}\nv_mov_b32 {v(dq+1)}, 0xff800000"))
        for r in range(16):
            kl = 8*(r // 4) + r % 4
            q.append(lambda kl=kl: A(f"v_cmp_gt_i32 vcc, {kl}, {v(dq)}"))
            q.append(lambda r=r: A(f"v_cndmask_b32 {v(MSK+r)}, 0, {v(dq+1)}, vcc"))
            q.append(lambda r=r: A(f"v_xor_b32 {v(MSK+16+r)}, {v(MSK+r)}, {v(dq+1)}"))
        self.bgq = q
        def M(T, b, st_):
            acc = ACC + 32*b + 16*T
            A(f"v_mfma_f32_32x32x16_bf16 {v(acc,16)}, {v(AF+8*(st_%2)+4*T,4)}, {v(RING+8*(st_%R)+4*b,4)}, {v(acc,16) if st_ else 0}")
        csA = vTMP + 4
        ncs = 0
        cs_reg = {}
        for st_ in range(40):
            qn = (st_ + 1) // 8
            if (st_ + 1) % 8 == 0 and qn < 5 and qn >= c.p1_npre:
                A.wait(vm=("W", qn))
                A("s_barrier")
            A.wait(vm=("B", st_), lg=("A", st_))
            M(0, 1, st_)
            if st_ + 1 < 40: rdA(0, st_ + 1)
            self.bg(1)
            M(1, 1, st_)
            if st_ + 1 < 40: rdA(1, st_ + 1)
            if st_ + R < 40: ldB(1, st_ + R)
            M(0, 0, st_)
            if st_ % 8 == 1 and st_ // 8 + c.p1_npre < 5:
                self.wq_dma(st_ // 8 + c.p1_npre, ("W", st_ // 8 + c.p1_npre))
            self.bg(2)
            M(1, 0, st_)
            if st_ + R < 40: ldB(0, st_ + R)
            elif ncs < 8:
                for k in range(2):
                    reg = RING + 8*(st_ % R) + 4*k
                    A(f"ds_read_b128 {v(reg,4)}, {v(vH16)} offset:{LCSQ + 32*ncs}", tag="cs")
                    cs_reg[ncs] = reg
                    ncs += 1
            self.bg(1)
        self.bg_flush()
        assert ncs == 8
        self.stamp()
        Q = WK + 184
        self.Q = Q
        PK = AF
        A(f"s_mul_i32 {sT_(0)}, {s(sW)}, 3072\ns_sub_u32 {sT_(1)}, {7*3072}, {sT_(0)}")
        A(f"s_mul_i32 {sT_(4)}, {s(sC)}, {24*KB}\ns_add_u32 {sT_(4)}, {sT_(4)}, {s(sACT)}\ns_add_u32 {sT_(4)}, {sT_(4)}, {KV_ - LKV}")
        A(f"v_mov_b32 {v(vTMP+5)}, 0x3f803f80")
        A.wait(lg="cs")
        ad = vTMP
        for b in (1, 0):
            a0, a1, sc = ACC + 32*b, ACC + 32*b + 16, SC + 4*b
            for i, r in enumerate((vKr, vKx0, vKx1)):
                A(f"v_add_u32 {v(ad+i)}, {sT_(b)}, {v(r)}")
            def center(T, lo, hi):
                for r in range(lo, hi, 2):
                    x = a0 + 16*T + r
                    A(f"v_pk_fma_f32 {v(x,2)}, {v(cs_reg[4*T + r//4] + r % 4, 2)}, {v(sc,2)}, {v(x,2)} op_sel_hi:[1,0,1]")
            def scale(dst, src, n, pair, hi):
                for r in range(0, n, 2):
                    A(f"v_pk_mul_f32 {v(dst+r,2)}, {v(src+r,2)}, {v(pair,2)} op_sel:[0,{hi}] op_sel_hi:[1,{hi}]")
            def cvt(dst, src, n):
                for r in range(0, n, 2):
                    A(f"v_cvt_pk_bf16_f32 {v(dst+r//2)}, {v(src+r)}, {v(src+r+1)}")
            center(1, 0, 16); scale(a1, a1, 16, sc, 1); cvt(PK, a1, 16)
            for i in (6, 7):
                A(f"v_cndmask_b32 {v(PK+i)}, {v(PK+i)}, {v(vTMP+5)}, {s(sHI,2)}")
            self.st(v(PK,4), ad, sT_(4), 0, " sc1", tag=("kv", b))
            A(f"ds_write_b128 {v(ad)}, {v(PK,4)} offset:{8*3072}")
            center(0, 8, 16)
            self.st(v(PK+4,4), ad+2, sT_(4), 0, " sc1", tag=("kv", b))
            A(f"ds_write_b128 {v(ad+2)}, {v(PK+4,4)} offset:{8*3072}")
            scale(a1, a0+8, 8, sc, 1); cvt(PK+8, a1, 8)
            scale(a0+8, a0+8, 4, sc+2, 1)
            self.st(v(PK+8,4), ad+1, sT_(4), 0, " sc1", tag=("kv", b))
            A(f"ds_write_b128 {v(ad+1)}, {v(PK+8,4)} offset:{8*3072}")
            center(0, 0, 8); scale(a0, a0, 8, sc+2, 0); cvt(Q+8*b, a0, 12)
        A.wait_all(lg=True)
        A("s_barrier")
        self.stamp()

    def w1_dma_ops(self, rounds, tag):
        A = self.A
        ops = []
        for rd in rounds:
            def head(rd=rd):
                A(f"s_add_u32 {sT_(10)}, {s(sW)}, {4*rd}\ns_mul_i32 {sT_(11)}, {sT_(10)}, {7*KB}\ns_mul_i32 {sT_(10)}, {sT_(10)}, 108")
                A(f"s_add_u32 {sT_(10)}, {sT_(10)}, {s(sTILE0)}\ns_lshl_b32 {sT_(10)}, {sT_(10)}, 10\ns_add_u32 {sT_(10)}, {sT_(10)}, {W1T}")
            for f in range(7):
                def op(f=f, head=head):
                    if f == 0:
                        head()
                    if f == 4:
                        A(f"s_add_u32 {sT_(10)}, {sT_(10)}, 4096")
                    A(f"s_add_u32 m0, {sT_(11)}, {LW + (4096 if f >= 4 else 0)}")
                    self.dma(vL16, WS, sT_(10), 1024*(f % 4), tag=tag)
                ops.append(op)
        return ops

    def wreg_ops(self, which):
        A = self.A
        ops = []
        for ft in range(5):
            def op(ft=ft):
                def body():
                    A(f"s_mul_i32 {sT_(12)}, {s(sCB)}, 5\ns_add_u32 {sT_(12)}, {sT_(12)}, {ft}")
                    if which == "wo":
                        A(f"s_mul_i32 {sT_(12)}, {sT_(12)}, 20\ns_mul_i32 {sT_(13)}, {s(sW)}, 5")
                    else:
                        A(f"s_mul_i32 {sT_(12)}, {sT_(12)}, 54\ns_mul_i32 {sT_(13)}, {s(sKH)}, 27\ns_add_u32 {sT_(12)}, {sT_(12)}, {sT_(13)}\ns_mul_i32 {sT_(13)}, {s(sW)}, 7")
                    A(f"s_add_u32 {sT_(12)}, {sT_(12)}, {sT_(13)}\ns_lshl_b32 {sT_(12)}, {sT_(12)}, 10\ns_add_u32 {sT_(12)}, {sT_(12)}, {WO if which == 'wo' else W2T}")
                    n = 5 if which == "wo" else 7
                    for k in range(n):
                        if k == 4:
                            A(f"s_add_u32 {sT_(12)}, {sT_(12)}, 4096")
                        reg = (aWO if which == "wo" else aW2) + 4*(n*ft + k)
                        self.ld(a(reg,4), vW3 if k == 6 else vL16, sT_(12), 1024*(k % 4))
                self.if_layer0(body)
            ops.append(op)
        return ops

    def p2(self):
        A, c = self.A, self.c
        MSK, Q = self.MSK, self.Q
        O, S, P, KF, VF = WK, WK + 32, WK + 64, WK + 80, WK + 96
        self.O, self.S, self.P, self.KF, self.VF = O, S, P, KF, VF
        A(f"s_lshl_b32 {sT_(5)}, {s(sC)}, 7\ns_lshl_b32 {sT_(6)}, {s(sW)}, 3\ns_add_u32 {sT_(5)}, {sT_(5)}, {sT_(6)}")
        A(f"s_add_u32 {sT_(5)}, {sT_(5)}, {s(sFL)}\ns_add_u32 {sT_(5)}, {sT_(5)}, {FKV}\ns_sub_u32 {sT_(6)}, {sT_(5)}, {FL_STRIDE}")
        A(f"s_add_u32 {sT_(7)}, {sT_(4)}, {LKV - ACT_STRIDE}")
        A(f"s_cmp_eq_u32 {s(sT)}, 0\ns_cselect_b32 {sT_(8)}, {OOB}, 0\nv_add_u32 {v(vTMP+5)}, {sT_(8)}, {v(vL16)}")
        A(f"s_lshl_b32 {sT_(2)}, {s(sC)}, 9\ns_add_u32 {sT_(2)}, {sT_(2)}, {s(sACT)}\ns_add_u32 {sT_(2)}, {sT_(2)}, {O_}")
        A(f"s_lshl_b32 {sT_(3)}, {s(sC)}, 7\ns_add_u32 {sT_(3)}, {sT_(3)}, {s(sACT)}\ns_add_u32 {sT_(3)}, {sT_(3)}, {O_ + 16384}")
        A(f"v_mov_b32 {v(vTMP+4)}, 0")
        labels = [A.newlabel(f"att{w}") for w in range(4)]
        done = A.newlabel("attdone")
        for w in range(1, 4):
            A(f"s_cmp_eq_u32 {s(sW)}, {w}\ns_cbranch_scc1 {labels[w]}")
        vm0, lg0 = list(A.vm), list(A.lg)
        ns = self.nstamp
        for w in range(4):
            A.vm, A.lg = list(vm0), list(lg0)
            self.nstamp = ns
            A.label(labels[w])
            self.attn_wave(w)
            if w < 3:
                A(f"s_branch {done}")
        A.label(done)
        A(f"s_lshl_b32 {sT_(0)}, {s(sW)}, 5\ns_add_u32 {sT_(0)}, {sT_(0)}, {s(sC)}\ns_lshl_b32 {sT_(0)}, {sT_(0)}, 2\ns_add_u32 {sT_(0)}, {sT_(0)}, {s(sFL)}")
        A.wait_all(vm=True)
        self.dual(lambda fl: self.post(sT_(0), FO, fl))
        A("s_barrier")
        self.stamp()

    def halo_fetch(self, tile, which):
        A = self.A
        l = A.newlabel("nohalo")
        A(f"s_cmp_eq_u32 {s(sT)}, 0\ns_cbranch_scc1 {l}")
        keep = list(A.vm)
        self.poll(vTMP+4, sT_(6), 4*which)
        A.vm = keep
        A.label(l)
        A(f"s_add_u32 {sT_(9)}, {sT_(7)}, {3072*tile}\ns_mov_b32 m0, {LKV + 3072*tile}")
        for i in range(3):
            self.dma(vTMP+5, WS, sT_(9), 1024*i, tag=("halo", which))

    def all_weights_ready(self):
        A = self.A
        def body():
            r = self.WT
            l, d = A.newlabel("pollw"), A.newlabel("polledw")
            A(f"s_mov_b32 {sT_(10)}, {FW}")
            A.label(l)
            A(f"buffer_load_dwordx4 {v(r,4)}, {v(vL16)}, {s(WS,4)}, {sT_(10)} offen sc1")
            A("s_waitcnt vmcnt(0)")
            for i in range(4):
                A(f"v_xor_b32 {v(r+i)}, {v(r+i)}, {v(vNon)}")
            A(f"v_or3_b32 {v(r)}, {v(r)}, {v(r+1)}, {v(r+2)}\nv_or_b32 {v(r)}, {v(r)}, {v(r+3)}")
            A(f"v_cmp_lt_u32 vcc, 15, {v(r)}")
            A(f"s_cbranch_vccz {d}")
            A(f"s_sub_u32 {s(sBUD)}, {s(sBUD)}, 1\ns_cbranch_scc0 {l}\ns_mov_b32 {s(sBUD)}, 0")
            A.label(d)
            A(f"s_lshl_b32 {sT_(11)}, {s(sT)}, 2\ns_add_u32 {sT_(10)}, {sT_(10)}, {sT_(11)}\nv_lshlrev_b32 {v(r)}, 3, {v(vF32)}")
            A(f"buffer_load_dword {v(r+1)}, {v(r)}, {s(WS,4)}, {sT_(10)} offen sc1")
            A(f"s_lshl_b32 {sT_(10)}, {s(sTILE0)}, 6\ns_add_u32 {sT_(10)}, {sT_(10)}, {CS1}\nv_lshlrev_b32 {v(r)}, 3, {v(vLane)}")
            for k in range(4):
                A(f"buffer_load_dwordx2 {v(r+2+2*k,2)}, {v(r)}, {s(WS,4)}, {sT_(10)} offen sc1")
                if k < 3:
                    A(f"s_add_u32 {sT_(10)}, {sT_(10)}, {1792*4}")
            A(f"s_add_u32 {sT_(11)}, {s(sNONCE)}, {s(sXCC)}")
            A("s_waitcnt vmcnt(0)")
            A(f"v_cmp_ne_u32 vcc, {sT_(11)}, {v(r+1)}")
            for k in range(1, 4):
                A(f"v_pk_add_f32 {v(r+2,2)}, {v(r+2,2)}, {v(r+2+2*k,2)}")
            A(f"s_cmp_eq_u64 vcc, 0\ns_cselect_b32 {s(sFAST)}, {0 if self.c.force_safe else 1}, 0")
            A(f"ds_write_b64 {v(r)}, {v(r+2,2)} offset:{LCS1}")
            l2 = A.newlabel("noepo")
            A(f"s_cmp_lg_u32 s2, 0\ns_cbranch_scc1 {l2}")
            A(f"s_add_u32 {sT_(10)}, {s(sEPO)}, 1\nv_mov_b32 {v(r+1)}, {sT_(10)}")
            A(f"buffer_store_dword {v(r+1)}, {v(vL0)}, {s(WS,4)}, 0 offen offset:{EPOCH} sc1")
            A.label(l2)
        self.if_layer0(body)

    def attn_wave(self, w):
        A, c = self.A, self.c
        MSK, Q, O, S, P, KF, VF = self.MSK, self.Q, self.O, self.S, self.P, self.KF, self.VF
        self.WT = WK + 112
        lo, hi = w, 7 - w
        segs = [[], [], []]
        for kt in range(15 - w, 7, -1):
            segs[0].append((1, kt))
            if kt <= lo + 8:
                segs[0].append((0, kt))
        for kt in range(7, 3, -1):
            if kt >= hi:
                segs[1].append((1, kt))
            segs[1].append((0, kt))
        for kt in range(3, lo - 1, -1):
            segs[2].append((0, kt))
        blk = {0: lo, 1: hi}
        seen = set()
        gi = [0]
        tbuf = {}
        def mask(b, kt):
            if kt == blk[b] + 8: return v(MSK, 16)
            if kt == blk[b]: return v(MSK + 16, 16)
            return "0"
        def rdK(kt):
            tbuf[kt] = len(tbuf) % 2
            k = KF + 8*tbuf[kt]
            return [lambda: A(f"ds_read_b128 {v(k,4)}, {v(vKr)} offset:{3072*kt}", tag=("K", kt)),
                    lambda: A(f"ds_read_b64 {v(k+4,2)}, {v(vKx1)} offset:{3072*kt}", tag=("K", kt))]
        def rdV(kt):
            x = VF + 8*tbuf[kt]
            return [lambda s2=s2, u=u: A(f"ds_read_b64_tr_b16 {v(x+4*s2+2*u,2)}, {v(vV1 if u else vV0)} offset:{3072*kt + 256*s2}", tag=("V", kt))
                    for s2 in range(2) for u in range(2)]
        def QK(i, vis, part):
            b, kt = vis
            sreg, k = S + 16*(i % 2), KF + 8*tbuf[kt]
            if part == 0:
                A.wait(lg=("K", kt))
                A(f"v_mfma_f32_32x32x16_bf16 {v(sreg,16)}, {v(k,4)}, {v(Q+8*b,4)}, {mask(b, kt)}")
            else:
                A(f"v_mfma_f32_32x32x8bf16_1k {v(sreg,16)}, {v(k+4,2)}, {v(Q+8*b+4,2)}, {v(sreg,16)}")
        def PV(i, vis, part):
            b, kt = vis
            if part == 0:
                A.wait(lg=("V", kt))
            cin = v(O+16*b, 16)
            if b not in seen:
                cin = "0"; seen.add(b)
            A(f"v_mfma_f32_32x32x16_bf16 {v(O+16*b,16)}, {v(VF+8*tbuf[kt]+4*part,4)}, {v(P+8*(i%2)+4*part,4)}, {cin}")
        def EX(i, r0, r1):
            for r in range(r0, r1):
                A(f"v_exp_f32 {v(S+16*(i%2)+r)}, {v(S+16*(i%2)+r)}")
        def CV(i, d0, d1):
            for d in range(d0, d1):
                A(f"v_cvt_pk_bf16_f32 {v(P+8*(i%2)+d)}, {v(S+16*(i%2)+2*d)}, {v(S+16*(i%2)+2*d+1)}")
        def segment(vs, hooks):
            i0 = gi[0]
            n = len(vs)
            for f in rdK(vs[0][1]) + rdV(vs[0][1]): f()
            if n > 1 and vs[1][1] not in tbuf:
                for f in rdK(vs[1][1]): f()
            QK(i0, vs[0], 0); QK(i0, vs[0], 1)
            haveV = {vs[0][1]}
            for j in range(n):
                i = i0 + j
                ds = []
                nxt = vs[j+1] if j + 1 < n else None
                def slot(k=1):
                    for _ in range(k):
                        if ds: ds.pop(0)()
                    if k < 3: self.bg(1)
                if nxt: QK(i+1, nxt, 0)
                slot()
                EX(i, 0, 4)
                if nxt: QK(i+1, nxt, 1)
                if j + 2 < n and vs[j+2][1] not in tbuf:
                    ds += rdK(vs[j+2][1])
                slot()
                EX(i, 4, 8)
                if j > 0: PV(i-1, vs[j-1], 1)
                if nxt and nxt[1] not in haveV:
                    ds += rdV(nxt[1]); haveV.add(nxt[1])
                slot(2)
                CV(i, 0, 4)
                EX(i, 8, 12)
                PV(i, vs[j], 0)
                slot(3)
                EX(i, 12, 16)
                CV(i, 4, 8)
                assert not ds
                if j in hooks: hooks[j]()
            i = i0 + n - 1
            PV(i, vs[n-1], 1)
            gi[0] = i0 + n
        def post_kv(b):
            A.wait(vm=("kv", b))
            self.post(sT_(5), 4*(1-b), " sc1")
        segment(segs[0], {3: lambda: post_kv(1), 6: lambda: post_kv(0)})
        self.stamp()
        self.halo_fetch(hi, 0)
        self.all_weights_ready()
        A.wait(vm=("halo", 0))
        A("s_barrier")
        self.stamp()
        self.halo_fetch(lo, 1)
        self.bgq = self.wreg_ops("wo") + self.w1_dma_ops(range(3), "w1e")
        segment(segs[1], {})
        A.wait(vm=("halo", 1))
        A("s_barrier")
        segment(segs[2], {})
        self.bg_flush()
        self.stamp()
        self.attn_finish(w)

    def attn_finish(self, w):
        A = self.A
        O, P = self.O, self.P
        t = vTMP
        lf, lb = A.newlabel("fallback"), A.newlabel("fbdone")
        A(f"v_min_f32 {v(t+1)}, {v(O+12)}, {v(O+28)}\nv_add_f32 {v(t+2)}, {v(O+12)}, {v(O+28)}")
        A(f"v_cmp_nge_f32 vcc, {f32(2.0**64)}, {v(t+2)}\ns_cbranch_vccnz {lf}")
        A(f"v_cmp_nle_f32 vcc, {f32(2.0**-64)}, {v(t+1)}\ns_cbranch_vccnz {lf}")
        if self.c.force_fallback:
            A(f"s_branch {lf}")
        A.label(lb)
        self.tail.append(lambda: self.attn_fallback(w, lf, lb))
        for b in (1, 0):
            o = O + 16*b
            blk = (7 - w) if b else w
            A(f"v_rcp_f32 {v(o+12)}, {v(o+12)}")
            A(f"s_add_u32 {sT_(0)}, {sT_(2)}, {2*XT*blk}\ns_add_u32 {sT_(1)}, {sT_(3)}, {2*XT*blk}")
            for r in range(0, 12, 2):
                A(f"v_pk_mul_f32 {v(o+r,2)}, {v(o+r,2)}, {v(o+12,2)} op_sel_hi:[1,0]")
            for r in range(0, 12, 2):
                A(f"v_cvt_pk_bf16_f32 {v(P+8*b+r//2)}, {v(o+r)}, {v(o+r+1)}")
            def stores(fl, b=b):
                self.st(v(P+8*b,4), vXB, sT_(0), 0, fl)
                self.st(v(P+8*b+4,2), vOlst, sT_(1), 0, fl, n=2)
            self.dual(stores)

    def attn_fallback(self, w, lf, lb):
        A = self.A
        MSK, Q, O, S, P, KF, VF = self.MSK, self.Q, self.O, self.S, self.P, self.KF, self.VF
        A.track = False
        A.label(lf)
        ad, mx = self.WT, self.WT + 4
        for b in range(2):
            blk = (7 - w) if b else w
            for ps in range(2):
                loop, nof, nod, go = (A.newlabel(x) for x in ("fbl", "fbnf", "fbnd", "fbgo"))
                A(f"s_cmp_eq_u32 {s(sT)}, 0\ns_cselect_b32 {sT_(9)}, 8, {blk}")
                if ps == 0:
                    A(f"v_mov_b32 {v(mx)}, 0xff800000")
                else:
                    for r in range(16):
                        A(f"v_mov_b32 {v(O+16*b+r)}, 0")
                A.label(loop)
                A(f"s_mul_i32 {sT_(8)}, {sT_(9)}, 3072")
                for i, r in enumerate((vKr, vKx1, vV0, vV1)):
                    A(f"v_add_u32 {v(ad+i)}, {sT_(8)}, {v(r)}")
                A(f"ds_read_b128 {v(KF,4)}, {v(ad)}\nds_read_b64 {v(KF+4,2)}, {v(ad+1)}")
                for s2 in range(2):
                    for u in range(2):
                        A(f"ds_read_b64_tr_b16 {v(VF+4*s2+2*u,2)}, {v(ad+2+u)} offset:{256*s2}")
                A("s_waitcnt lgkmcnt(0)")
                A(f"s_cmp_lg_u32 {sT_(9)}, {blk}\ns_cbranch_scc1 {nof}")
                A(f"v_mfma_f32_32x32x16_bf16 {v(S,16)}, {v(KF,4)}, {v(Q+8*b,4)}, {v(MSK+16,16)}\ns_branch {go}")
                A.label(nof)
                A(f"s_cmp_lg_u32 {sT_(9)}, {blk+8}\ns_cbranch_scc1 {nod}")
                A(f"v_mfma_f32_32x32x16_bf16 {v(S,16)}, {v(KF,4)}, {v(Q+8*b,4)}, {v(MSK,16)}\ns_branch {go}")
                A.label(nod)
                A(f"v_mfma_f32_32x32x16_bf16 {v(S,16)}, {v(KF,4)}, {v(Q+8*b,4)}, 0")
                A.label(go)
                A(f"v_mfma_f32_32x32x8bf16_1k {v(S,16)}, {v(KF+4,2)}, {v(Q+8*b+4,2)}, {v(S,16)}")
                if ps == 0:
                    for r in range(0, 16, 2):
                        A(f"v_max3_f32 {v(mx)}, {v(S+r)}, {v(S+r+1)}, {v(mx)}")
                else:
                    for r in range(16):
                        A(f"v_sub_f32 {v(S+r)}, {v(S+r)}, {v(mx)}")
                    for r in range(16):
                        A(f"v_exp_f32 {v(S+r)}, {v(S+r)}")
                    for d in range(8):
                        A(f"v_cvt_pk_bf16_f32 {v(P+d)}, {v(S+2*d)}, {v(S+2*d+1)}")
                    for part in range(2):
                        A(f"v_mfma_f32_32x32x16_bf16 {v(O+16*b,16)}, {v(VF+4*part,4)}, {v(P+4*part,4)}, {v(O+16*b,16)}")
                A(f"s_add_u32 {sT_(9)}, {sT_(9)}, 1\ns_cmp_le_u32 {sT_(9)}, {blk+8}\ns_cbranch_scc1 {loop}")
                if ps == 0:
                    A(f"v_mov_b32 {v(mx+1)}, {v(mx)}\nv_permlane32_swap_b32 {v(mx)}, {v(mx+1)}\nv_max_f32 {v(mx)}, {v(mx)}, {v(mx+1)}")
        A(f"s_branch {lb}")
        A.track = True

    def splitk(self, nst, wbase, rounds, loads, ring, lead, regs, hooks):
        A = self.A
        RING, ACC, TMP, RD = regs
        total = rounds * 4 * nst
        for g in range(min(lead, total)):
            loads(g)
        pend = []
        for rd in range(rounds):
            for p in range(4):
                gp = 4*rd + p
                last = (rd == rounds - 1 and p == 3)
                acc = RES if last else ACC + 20*(gp % 2)
                k = 0
                for st_ in range(nst):
                    g = gp*nst + st_
                    A.wait(vm=("act", g))
                    for ft in range(5):
                        cin = v(acc+4*ft, 4) if (st_ or last) else "0"
                        A(f"v_mfma_f32_16x16x32_bf16 {v(acc+4*ft,4)}, {a(wbase+4*(nst*ft+st_),4)}, {v(RING+4*(g % ring),4)}, {cin}")
                        if ft == 4 and g + lead < total:
                            loads(g + lead)
                        elif k >= 4 and pend:
                            pend.pop(0)()
                        elif (gp, k) in hooks:
                            hooks.pop((gp, k))()
                        k += 1
                while pend and p != 3:
                    pend.pop(0)()
                if p < 3:
                    if p == 0 and rd > 0:
                        pend.append(lambda: A("s_barrier"))
                    for ft in range(5):
                        pend.append(lambda ft=ft, acc=acc, p=p: A(f"ds_write_b128 {v(vRW+p)}, {v(acc+4*ft,4)} offset:{1024*ft}", tag="rw"))
                if p == 2:
                    def sync():
                        A.wait(lg="rw")
                        A("s_barrier")
                    pend.append(sync)
                    for src in range(3):
                        dst = TMP if src == 0 else RD + 20*(src - 1)
                        for ft in range(5):
                            pend.append(lambda ft=ft, dst=dst, src=src: A(f"ds_read_b128 {v(dst+4*ft,4)}, {v(vRW+3)} offset:{5120*src+1024*ft}", tag=("rr", src)))
                    for src in (1, 2):
                        for r in range(0, 20, 2):
                            def add(src=src, r=r):
                                if r == 0:
                                    A.wait(lg=("rr", src))
                                for e in range(2):
                                    A(f"v_add_f32 {v(TMP+r+e)}, {v(TMP+r+e)}, {v(RD+20*(src-1)+r+e)}")
                            pend.append(add)
                    if ("red", rd) in hooks:
                        pend += hooks[("red", rd)]
                if p == 3 and not last:
                    for r in range(0, 20, 2):
                        pend.append(lambda r=r, acc=acc: A(f"v_add_f32 {v(TMP+r)}, {v(TMP+r)}, {v(acc+r)}\nv_add_f32 {v(TMP+r+1)}, {v(TMP+r+1)}, {v(acc+r+1)}"))
                    pend += hooks[("out", rd)]
        while pend:
            pend.pop(0)()
        assert all(isinstance(k_[0], str) for k_ in hooks), hooks
        for r in range(0, 20, 2):
            A(f"v_pk_add_f32 {v(RES+r,2)}, {v(RES+r,2)}, {v(TMP+r,2)}")

    def tile_offsets(self, dst, rowblk, stride, extra):
        A = self.A
        for p in range(4):
            A(f"s_add_u32 {s(dst+p)}, {s(sW)}, {p+1}\ns_and_b32 {s(dst+p)}, {s(dst+p)}, 3\ns_add_u32 {s(dst+p)}, {s(dst+p)}, {rowblk}")
            A(f"s_mul_i32 {s(dst+p)}, {s(dst+p)}, {stride}\ns_add_u32 {s(dst+p)}, {s(dst+p)}, {extra}")

    def p3(self):
        A = self.A
        RING, ACC, TMP, RD = WK, WK + 80, WK + 120, WK + 140
        A(f"s_lshl_b32 {sT_(12)}, {s(sW)}, 12\ns_add_u32 {sT_(12)}, {sT_(12)}, {s(sACT)}\ns_add_u32 {sT_(12)}, {sT_(12)}, {O_}\ns_lshl_b32 {sT_(13)}, {s(sRB)}, 2")
        self.tile_offsets(T0 + 4, sT_(13), XT, sT_(12))
        A(f"s_mul_i32 {sT_(8)}, {s(sW)}, 3072\ns_sub_u32 {sT_(8)}, 16384, {sT_(8)}")
        A(f"s_add_u32 {sT_(12)}, {s(sRB)}, 1\ns_bfe_u32 {sT_(12)}, {sT_(12)}, 0x10001\ns_lshl_b32 {sT_(12)}, {sT_(12)}, 8")
        A(f"s_lshl_b32 {sT_(13)}, {s(sW)}, 5\ns_add_u32 {sT_(12)}, {sT_(12)}, {sT_(13)}\ns_add_u32 {sT_(12)}, {sT_(12)}, {s(sFL)}")
        self.pub_offsets(X1_, X1S_, FX1, 0)
        self.poll(vFp3, sT_(12), FO)
        self.stamp()
        def loads(g):
            p, st_ = divmod(g, 5)
            r = RING + 4*g
            if st_ < 4:
                self.ld(v(r,4), vL16, sT_(4+p), 1024*st_, tag=("act", g))
            else:
                A(f"s_add_u32 {sT_(4+p)}, {sT_(4+p)}, {sT_(8)}")
                self.ld(v(r,2), vOlld, sT_(4+p), 0, tag=("act", g), n=2)
                self.ld(v(r+2,2), vOlld, sT_(4+p), 128, tag=("act", g), n=2)
        self.splitk(5, aWO, 1, loads, 20, 7, (RING, ACC, TMP, RD), {})
        self.stamp()
        self.dual(lambda fl: self.publish(fl, WK))
        A("s_barrier")

    def p4(self):
        A = self.A
        R = 5
        ACC, AF, RING, STT, SC, LB = WK, WK + 56, WK + 112, WK + 152, WK + 160, WK + 168
        for i in range(3):
            A(f"v_add_u32 {v(LB+i)}, {LW + 49*KB*i}, {v(vL16)}")
        A(f"s_lshr_b32 {sT_(5)}, {s(sRB)}, 1\ns_lshl_b32 {sT_(5)}, {sT_(5)}, 2\ns_add_u32 {sT_(5)}, {sT_(5)}, {s(sW)}")
        A(f"s_mul_i32 {sT_(0)}, {sT_(5)}, {2*XT}\ns_add_u32 {sT_(0)}, {sT_(0)}, {s(sACT)}\ns_add_u32 {sT_(0)}, {sT_(0)}, {X1_}\ns_add_u32 {sT_(1)}, {sT_(0)}, {XT}")
        A(f"s_lshl_b32 {sT_(2)}, {sT_(5)}, 11\ns_add_u32 {sT_(2)}, {sT_(2)}, {s(sACT)}\ns_add_u32 {sT_(2)}, {sT_(2)}, {X1S_}")
        A(f"s_mul_i32 {sT_(3)}, {sT_(5)}, {2*HT}\ns_lshl_b32 {sT_(4)}, {s(sTILE0)}, 9\ns_add_u32 {sT_(3)}, {sT_(3)}, {sT_(4)}")
        A(f"s_add_u32 {sT_(3)}, {sT_(3)}, {s(sACT)}\ns_add_u32 {sT_(3)}, {sT_(3)}, {H_}")
        A(f"s_lshl_b32 {sT_(4)}, {s(sC)}, 2\ns_add_u32 {sT_(4)}, {sT_(4)}, {s(sW)}\ns_lshl_b32 {sT_(4)}, {sT_(4)}, 2\ns_add_u32 {sT_(4)}, {sT_(4)}, {s(sFL)}")
        A(f"s_lshl_b32 {sT_(5)}, {sT_(5)}, 6\ns_add_u32 {sT_(5)}, {sT_(5)}, {s(sFL)}")
        def rdA(st_, ft):
            A(f"ds_read_b128 {v(AF + 28*(st_%2) + 4*ft, 4)}, {v(LB + st_//7)} offset:{(7*(st_%7)+ft)*KB}", tag=("A", st_))
        def ldB(tk, st_):
            if st_ % 4 == 0 and st_:
                A(f"s_add_u32 {sT_(tk)}, {sT_(tk)}, 4096")
            self.ld(v(RING + 8*(st_ % R) + 4*tk, 4), vL16, sT_(tk), 1024*(st_ % 4), tag=("B", st_))
        for ft in range(7):
            rdA(0, ft)
        self.poll(vF16, sT_(5), FX1)
        self.stamp()
        for st_ in range(3):
            ldB(0, st_); ldB(1, st_)
        for tk in range(2):
            self.ld(v(STT+4*tk,4), vSld4, sT_(2), 1024*tk, tag="stats")
        vq = [lambda: A.wait(vm="stats")]
        for tk in range(2):
            r, sc = STT + 4*tk, SC + 4*tk
            vq += [lambda r=r: A(f"v_add_f32 {v(r)}, {v(r)}, {v(r+1)}\nv_add_f32 {v(r+2)}, {v(r+2)}, {v(r+3)}"),
                   lambda r=r: A(f"v_add_f32 {v(r)}, {v(r)}, {v(r+2)}"),
                   lambda r=r: A(f"v_mov_b32 {v(r+1)}, {v(r)}"),
                   lambda r=r: A(f"v_permlane32_swap_b32 {v(r)}, {v(r+1)}"),
                   lambda r=r: A(f"v_add_f32 {v(r)}, {v(r)}, {v(r+1)}"),
                   lambda r=r: A(f"v_mov_b32 {v(r+1)}, {v(r)}"),
                   lambda r=r: A(f"v_permlane16_swap_b32 {v(r)}, {v(r+1)}")]
            vq += self.ln_scalars(r, r+1, sc, r+2)
            vq += [lambda r=r, sc=sc: A(f"v_mul_f32 {v(sc+1)}, {f32(-LOG2E)}, {v(r+2)}"),
                   lambda r=r, sc=sc: A(f"v_mul_f32 {v(sc+2)}, {v(r+1)}, {v(r+2)}")]
        late = self.w1_dma_ops(range(3, 5), "w1l")
        w2 = self.wreg_ops("w2")
        for st_ in range(20):
            if st_ == 11:
                A.wait(vm="w1l")
                A("s_barrier")
            A.wait(vm=("B", st_), lg=("A", st_))
            k = 0
            for ft in range(7):
                for tk in range(2):
                    acc = ACC + 8*ft + 4*tk
                    A(f"v_mfma_f32_16x16x32_bf16 {v(acc,4)}, {v(AF+28*(st_%2)+4*ft,4)}, {v(RING+8*(st_%R)+4*tk,4)}, {v(acc,4) if st_ else 0}")
                    if k in (0, 1, 3, 4, 6, 7, 9):
                        f = (0, 1, 3, 4, 6, 7, 9).index(k)
                        if st_ + 1 < 20:
                            rdA(st_ + 1, f)
                        else:
                            A(f"ds_read_b128 {v(AF+4*f,4)}, {v(vG16)} offset:{LCS1+64*f}", tag="cs")
                    elif k in (2, 5, 8, 10) and st_ == 0:
                        j = (2, 5, 8, 10).index(k)
                        ldB(j % 2, 3 + j // 2)
                    elif k in (12, 13) and st_ + R < 20:
                        ldB(k - 12, st_ + R)
                    elif k in (2, 5, 8) and late and st_ >= 2:
                        late.pop(0)()
                    elif k == 8 and not late and w2 and st_ >= 8 and st_ % 2 == 0:
                        w2.pop(0)()
                    elif k in (10, 11) and vq and st_ >= 3:
                        vq.pop(0)()
                    k += 1
        while vq: vq.pop(0)()
        assert not late and not w2
        self.stamp()
        A.wait(lg="cs")
        A("s_barrier")
        Z, PKD = RING, RING + 16
        def epi(fl):
            l6 = A.newlabel("six")
            for ft in range(7):
                if ft == 6:
                    A(f"s_and_b32 {sT_(6)}, {s(sC)}, 3\ns_cmp_eq_u32 {sT_(6)}, 3\ns_cbranch_scc1 {l6}")
                z, d = Z + 8*(ft % 2), PKD + 4*(ft % 2)
                x = ACC + 8*ft
                for tk in range(2):
                    for r in (0, 2):
                        A(f"v_pk_fma_f32 {v(x+4*tk+r,2)}, {v(AF+4*ft+r,2)}, {v(SC+4*tk,2)}, {v(x+4*tk+r,2)} op_sel_hi:[1,0,1]")
                for tk in range(2):
                    for r in (0, 2):
                        A(f"v_pk_mul_f32 {v(z+4*tk+r,2)}, {v(x+4*tk+r,2)}, {v(SC+4*tk,2)} op_sel:[0,1] op_sel_hi:[1,1]")
                for r in range(8):
                    A(f"v_exp_f32 {v(z+r)}, {v(z+r)}")
                for tk in range(2):
                    for r in (0, 2):
                        A(f"v_pk_fma_f32 {v(z+4*tk+r,2)}, {v(z+4*tk+r,2)}, {v(SC+4*tk+2,2)}, {v(SC+4*tk+2,2)} op_sel_hi:[1,0,0]")
                for r in range(8):
                    A(f"v_rcp_f32 {v(z+r)}, {v(z+r)}")
                for r in range(0, 8, 2):
                    A(f"v_pk_mul_f32 {v(x+r,2)}, {v(x+r,2)}, {v(z+r,2)}")
                for r in range(4):
                    A(f"v_cvt_pk_bf16_f32 {v(d+r)}, {v(x+2*r)}, {v(x+2*r+1)}")
                for i in range(2):
                    A(f"v_permlane16_swap_b32 {v(d+i)}, {v(d+2+i)}")
                self.st(v(d,4), vHst, sT_(3), 512*ft, fl)
            A.label(l6)
            A.wait_all(vm=True)
            self.post(sT_(4), FH, fl)
        self.dual(epi)
        self.stamp()

    def p5(self):
        A, c = self.A, self.c
        RING, ACC, TMP, RD, PXR = WK, WK + 48, WK + 88, WK + 108, WK + 148
        sO = T0 + 4
        A(f"s_mul_i32 {sT_(12)}, {s(sKH)}, 27\ns_mul_i32 {sT_(13)}, {s(sW)}, 7\ns_add_u32 {sT_(12)}, {sT_(12)}, {sT_(13)}\ns_lshl_b32 {sT_(12)}, {sT_(12)}, 10")
        A(f"s_add_u32 {sT_(12)}, {sT_(12)}, {s(sACT)}\ns_add_u32 {sT_(12)}, {sT_(12)}, {H_}\ns_xor_b32 {sT_(13)}, {s(sRB)}, 1\ns_lshl_b32 {sT_(13)}, {sT_(13)}, 2")
        self.tile_offsets(sO, sT_(13), HT, sT_(12))
        A(f"s_mul_i32 {sT_(3)}, {s(sKH)}, {8*HT}\ns_sub_u32 {sT_(3)}, {sT_(3)}, {4*HT + 4096}")
        A(f"s_lshl_b32 {sT_(10)}, {s(sC)}, 2\ns_add_u32 {sT_(10)}, {sT_(10)}, {s(sW)}\ns_xor_b32 {sT_(11)}, {sT_(10)}, 32")
        for r in (10, 11):
            A(f"s_mul_i32 {sT_(r+4)}, {sT_(r)}, 5120\ns_add_u32 {sT_(r+4)}, {sT_(r+4)}, {s(sACT)}\ns_add_u32 {sT_(r+4)}, {sT_(r+4)}, {PX_}")
            A(f"s_lshl_b32 {sT_(r)}, {sT_(r)}, 2\ns_add_u32 {sT_(r)}, {sT_(r)}, {s(sFL)}")
        A(f"s_lshl_b32 {sT_(12)}, {s(sRB)}, 7\ns_add_u32 {sT_(12)}, {sT_(12)}, {s(sFL)}")
        A(f"v_mov_b32 {v(vTMP+4)}, 0")
        self.pub_offsets(X_, XS_, FX, 1)
        self.poll(vF32, sT_(12), FH)
        self.stamp()
        def loads(g):
            gp, st_ = divmod(g, 7)
            so = s(sO + gp % 4)
            if st_ == 0 and gp >= 4:
                A(f"s_add_u32 {so}, {so}, {sT_(3)}")
            if st_ == 4:
                A(f"s_add_u32 {so}, {so}, 4096")
            self.ld(v(RING + 4*(g % 12), 4), vW3 if st_ == 6 else vL16, so, 1024*(st_ % 4), tag=("act", g))
        def px_store():
            def f(fl):
                for ft in range(5):
                    if ft == 4:
                        A(f"s_add_u32 {sT_(14)}, {sT_(14)}, 4096")
                    self.st(v(TMP+4*ft,4), vL16, sT_(14), 1024*(ft % 4), fl, tag="px")
            self.dual(f)
        def px_post():
            A.wait(vm="px")
            self.dual(lambda fl: self.post(sT_(10), FP, fl))
        def px_probe():
            A(f"buffer_load_dword {v(vTMP+1)}, {v(vTMP+4)}, {s(WS,4)}, {sT_(11)} offen offset:{FP} sc1", tag="probe")
        def px_fetch():
            A.wait(vm="probe")
            ok = A.newlabel("pxok")
            A(f"v_cmp_ne_u32 vcc, {v(vTMP+1)}, {v(vNon)}\ns_cbranch_vccz {ok}")
            keep = list(A.vm)
            self.poll(vTMP+4, sT_(11), FP)
            A.vm = keep
            A.label(ok)
            for ft in range(5):
                if ft == 4:
                    A(f"s_add_u32 {sT_(15)}, {sT_(15)}, 4096")
                self.ld(v(PXR+4*ft,4), vL16, sT_(15), 1024*(ft % 4), tag="pxin")
        def px_add(r):
            if r == 0:
                A.wait(vm="pxin")
            A(f"v_add_f32 {v(TMP+r)}, {v(TMP+r)}, {v(PXR+r)}\nv_add_f32 {v(TMP+r+1)}, {v(TMP+r+1)}, {v(PXR+r+1)}")
        hooks = {("out", 0): [px_store],
                 (5, 30): px_post,
                 (6, 20): px_probe,
                 (7, 2): px_fetch,
                 ("red", 1): [lambda r=r: px_add(r) for r in range(0, 20, 2)]}
        for q in range(c.p1_npre):
            hooks[(1 + q, 21)] = lambda q=q: self.if_layer0(lambda: self.wq_dma(q, None))
        self.splitk(7, aW2, 2, loads, 12, 8, (RING, ACC, TMP, RD), hooks)
        self.stamp()

    def final_store(self):
        A = self.A
        d, t = WK, WK + 16
        A(f"v_and_b32 {v(t)}, 15, {v(vLane)}\nv_mul_u32_u24 {v(t)}, 1280, {v(t)}\nv_add_u32 {v(t)}, {v(t)}, {v(vH16)}")
        A(f"v_bfe_u32 {v(t+2)}, {v(vLane)}, 4, 1\nv_lshl_add_u32 {v(t+1)}, {v(t+2)}, 3, {v(t)}\nv_lshl_add_u32 {v(t)}, {v(t+2)}, 5, {v(t)}")
        A(f"s_lshl_b32 {sT_(0)}, {s(sT)}, 4\ns_lshl_b32 {sT_(1)}, {s(sRB)}, 2\ns_add_u32 {sT_(0)}, {sT_(0)}, {sT_(1)}")
        A(f"s_add_u32 {sT_(0)}, {sT_(0)}, {s(sW)}\ns_mul_i32 {sT_(0)}, {sT_(0)}, {16*1280}")
        A(f"s_mul_i32 {sT_(1)}, {s(sCB)}, 160\ns_add_u32 {sT_(0)}, {sT_(0)}, {sT_(1)}")
        self.pack_res(d)
        self.st(v(d+8,2), t+1, sT_(0), 128, "", n=2, srd=SRD_A)
        self.st(v(d,4), t, sT_(0), 0, "", srd=SRD_A)
        self.st(v(d+4,4), t, sT_(0), 64, "", srd=SRD_A)

    def build(self):
        A, c = self.A, self.c
        self.prologue()
        A.label("L_layer")
        self.p1()
        self.p2()
        self.p3()
        self.p4()
        self.p5()
        A(f"s_cmp_lg_u32 {s(sLAYER)}, 0\ns_cbranch_scc1 L_final")
        self.dual(lambda fl: self.publish(fl, WK))
        self.dump_stamps()
        A(f"s_mov_b32 {s(sLAYER)}, 1\ns_add_u32 {s(sACT)}, {s(sACT)}, {8*ACT_STRIDE}\ns_add_u32 {s(sFL)}, {s(sFL)}, {8*FL_STRIDE}")
        A("s_branch L_layer")
        A.label("L_final")
        self.final_store()
        if c.stamps:
            A("s_waitcnt vmcnt(0)")
            A(f"s_memtime {s(ST0, 2)}")
        self.dump_stamps()
        A.label("L_end")
        A("s_endpgm")
        A.label("L_hotend")
        while self.tail:
            self.tail.pop(0)()
        A.pad()
        return self.wrap(A.text())

    def wrap(self, body):
        ref = open(f"cdna_kernels/{NAME}.s.ref").read().split("\n")
        head = [l for l in ref if l.startswith(";") and "@launch" not in l]
        k = NAME + "_kernel"
        return ("\n".join(head) + f"\n; @launch grid=(256,1,1) block=(256,1,1) lds={LDS_BYTES}\n"
                + f'.amdgcn_target "amdgcn-amd-amdhsa--gfx950"\n.text\n.globl {k}\n.p2align 8\n.type {k},@function\n'
                + f".set CODE_BYTES, L_hotend - {k} - 2048\n{k}:\n" + body
                + f'.section .rodata,"a"\n.p2align 6\n.amdhsa_kernel {k}\n  .amdhsa_next_free_vgpr 512\n  .amdhsa_next_free_sgpr 102\n'
                + "  .amdhsa_accum_offset 256\n  .amdhsa_group_segment_fixed_size 0\n  .amdhsa_kernarg_size 72\n  .amdhsa_user_sgpr_count 2\n"
                + "  .amdhsa_user_sgpr_kernarg_segment_ptr 1\n  .amdhsa_system_sgpr_workgroup_id_x 1\n.end_amdhsa_kernel\n")

def generate(**kw):
    c = Cfg()
    for k_, v_ in kw.items():
        setattr(c, k_, v_)
    return Gen(c).build()

if __name__ == "__main__":
    kw = {}
    out = f"cdna_kernels/{NAME}.s"
    for arg in sys.argv[1:]:
        if arg.startswith("out="):
            out = arg[4:]
        else:
            k_, v_ = arg.split("=")
            kw[k_] = eval(v_)
    open(out, "w").write(generate(**kw))
    print("wrote", out)
```
